```python
import torch

def _softmax(x, axis=-1):
    return torch.softmax(x, dim=axis)
def _gelu(x):
    return torch.nn.functional.gelu(x, approximate="tanh")
def _silu(x):
    return torch.nn.functional.silu(x)
def _sigmoid(x):
    return torch.sigmoid(x)
def _layernorm(x, axis=-1, eps=1e-5):
    m = x.mean(dim=axis, keepdim=True)
    v = x.var(dim=axis, keepdim=True, unbiased=False)
    return (x - m) / torch.sqrt(v + eps)
def _scatter_add(tgt, idx, src, axis=0):
    return tgt.clone().index_add_(axis, idx, src)
def _segment_sum(src, seg, n):
    out = torch.zeros((n,) + src.shape[1:], dtype=src.dtype)
    return out.index_add_(0, seg, src)
def _pad(x, pw):
    flat = tuple(v for pair in reversed(pw) for v in pair)
    return torch.nn.functional.pad(x, flat)

kernel_name = 'sequential_preLN__softmax_full_mha__dense_activation_silu__prompt'

def setup_inputs():

    _w = (lambda a: (lambda t: t.to(torch.bfloat16) if t.is_floating_point() else t)(torch.as_tensor(a)))
    def _A_setup():
        B, S, D = 1, 2048, 640
        return {
            "x": _w((lambda *s: torch.randn(*s, dtype=torch.bfloat16) * 0.05)(B, S, D)),
            "wqkv": _w((lambda *s: torch.randn(*s, dtype=torch.bfloat16) * 0.05)(D, 3 * D)),
            "wo": _w((lambda *s: torch.randn(*s, dtype=torch.bfloat16) * 0.05)(D, D)),
        }
    _A_in = _A_setup()

    def _B_setup():
        B, S, D, F = 1, 2048, 640, 1728
        return {
            "x": _w((lambda *s: torch.randn(*s, dtype=torch.bfloat16) * 0.05)(B, S, D)),
            "w1": _w((lambda *s: torch.randn(*s, dtype=torch.bfloat16) * 1.6)(D, F) * (D ** -0.5)),
            "w2": _w((lambda *s: torch.randn(*s, dtype=torch.bfloat16) * 0.2)(F, D) * (F ** -0.5)),
        }
    _B_in = _B_setup()

    return {
        "A_x": _A_in["x"],
        "A_wqkv": _A_in["wqkv"],
        "A_wo": _A_in["wo"],
        "B_x": _B_in["x"],
        "B_w1": _B_in["w1"],
        "B_w2": _B_in["w2"],
    }

def reference(A_x, A_wqkv, A_wo, B_x, B_w1, B_w2):
    def _A_ref(x, wqkv, wo):
        B, S, D = x.shape
        H = 32; Dh = D // H
        qkv = (lambda x, *d: x.permute(*d))((x @ wqkv).reshape(B, S, 3, H, Dh), 2, 0, 3, 1, 4)
        q, k, v = qkv[0], qkv[1], qkv[2]
        scale = Dh ** -0.5
        scores = torch.einsum("bhqd,bhkd->bhqk", q, k) * scale
        p = _softmax(scores, axis=-1)
        o = torch.einsum("bhqk,bhkd->bhqd", p, v)
        return (lambda x, *d: x.permute(*d))(o, 0, 2, 1, 3).reshape(B, S, D) @ wo

    def _B_ref(x, w1, w2):
        h = torch.einsum("bsd,df->bsf", x, w1)
        h = _silu(h)
        out = torch.einsum("bsf,fd->bsd", h, w2)
        return out

    x = A_x
    h = x + _A_ref(_layernorm(x, axis=-1), A_wqkv, A_wo)
    h2 = h + _B_ref(_layernorm(h, axis=-1), B_w1, B_w2)
    return h2
```

```python
import re

class Asm:
    def __init__(self):
        self.lines = []
        self.nv = 0
        self.ns = 0
        self.maxv = 0
        self.maxs = 0
    def reset_regs(self, v0=1, s0=4):
        self.nv = v0; self.ns = s0; self.maxv = v0; self.maxs = s0
    def v(self, n=1, align=None):
        if align is None: align = 1 if n == 1 else (2 if n in (2, 3) else 4)
        self.nv = (self.nv + align - 1) // align * align
        r = self.nv; self.nv += n; self.maxv = max(self.maxv, self.nv)
        return r
    def s(self, n=1, align=None):
        if align is None: align = 1 if n == 1 else (2 if n == 2 else 4)
        self.ns = (self.ns + align - 1) // align * align
        r = self.ns; self.ns += n; self.maxs = max(self.maxs, self.ns)
        assert self.ns <= 100
        return r
    def __call__(self, text):
        for ln in text.split("\n"):
            ln = ln.strip()
            if not ln: continue
            if ln.endswith(":") or ln.startswith("."):
                self.lines.append(ln)
            else:
                self.lines.append("    " + ln)
    def label(self, name): self.lines.append(name + ":")
    def text(self): return "\n".join(self.lines) + "\n"

def vr(r, n): return f"v[{r}:{r+n-1}]" if n > 1 else f"v{r}"
def sr(r, n): return f"s[{r}:{r+n-1}]" if n > 1 else f"s{r}"

_reg = re.compile(r"\b([vsa])(\d+)\b|\b([vsa])\[(\d+):(\d+)\]|\b(vcc|exec|m0|vcc_lo|vcc_hi|exec_lo|exec_hi)\b")
def regs_of(op):
    out = set()
    for m in _reg.finditer(op):
        if m.group(1): out.add((m.group(1), int(m.group(2))))
        elif m.group(3):
            for i in range(int(m.group(4)), int(m.group(5)) + 1): out.add((m.group(3), i))
        else:
            out.add(("x", m.group(6).split("_")[0]))
    return out
TRANS = ("v_exp_", "v_log_", "v_rcp_", "v_rsq_", "v_sqrt_", "v_sin_", "v_cos_")
def passes(mn):
    if "32x32x16" in mn or "32x32x8" in mn or "32x32x32" in mn: return 8
    if "16x16x32" in mn or "16x16x16" in mn or "16x16x64" in mn: return 4
    if "4x4x4" in mn: return 2
    raise ValueError(mn)
class I:
    pass
def parse(ln):
    ln = ln.split(";")[0].strip()
    if not ln or ln.endswith(":") or ln.startswith("."): return None
    parts = ln.split(None, 1)
    mn = parts[0]; ops = []
    if len(parts) > 1:
        ops = [o.strip() for o in re.split(r",(?![^\[]*\])", parts[1])]
    i = I(); i.mn = mn; i.ops = ops; i.text = ln
    i.w = set(); i.r = set(); i.kind = "other"; i.ws = 1
    i.srcC = set(); i.srcAB = set()
    R = lambda k: regs_of(ops[k]) if k < len(ops) else set()
    if mn == "s_nop": i.ws = int(ops[0], 0) + 1; return i
    if mn.startswith("v_mfma"):
        i.kind = "mfma"; i.p = passes(mn); i.w = R(0); i.srcAB = R(1) | R(2); i.srcC = R(3); i.r = i.srcAB | i.srcC
    elif mn.startswith("v_smfmac"):
        i.kind = "mfma"; i.p = passes(mn); i.w = R(0); i.srcAB = R(1) | R(2) | R(3); i.srcC = R(0); i.r = i.srcAB | i.srcC
    elif mn.startswith("v_"):
        i.kind = "valu"
        if mn.startswith("v_cmp"):
            i.w = R(0); i.r = set().union(*[R(k) for k in range(1, len(ops))])
        elif mn.startswith("v_permlane") and "swap" in mn:
            i.w = R(0) | R(1); i.r = R(0) | R(1)
        elif mn.startswith(("v_add_co", "v_sub_co", "v_addc_co", "v_subb_co", "v_subrev_co", "v_mad_u64")):
            i.w = R(0) | R(1); i.r = set().union(*[R(k) for k in range(2, len(ops))])
        else:
            i.w = R(0); i.r = set().union(*[R(k) for k in range(1, len(ops))]) if len(ops) > 1 else set()
            if mn.startswith(("v_fmac", "v_dot2c", "v_pk_fmac", "v_writelane")) or "UNUSED_PRESERVE" in ln: i.r |= R(0)
    elif mn.startswith(("buffer_", "global_")):
        i.kind = "vmem"
        allr = set().union(*[R(k) for k in range(len(ops))])
        if " lds" in ln or "_lds_" in mn:
            i.r = allr | {("x", "m0")}; i.lds = True
        elif "load" in mn:
            i.w = R(0); i.r = set().union(*[R(k) for k in range(1, len(ops))])
            if "d16" in mn: i.r |= R(0)
        else:
            i.r = allr
            i.data = R(0) if mn.startswith("buffer_") else R(1)
            if "atomic" in mn and "sc0" in ln: i.w = R(0)
    elif mn.startswith("ds_"):
        i.kind = "ds"
        if "read" in mn or "permute" in mn or "swizzle" in mn:
            i.w = R(0); i.r = set().union(*[R(k) for k in range(1, len(ops))])
        else:
            i.r = set().union(*[R(k) for k in range(len(ops))])
    elif mn.startswith("s_"):
        i.kind = "salu"
        if mn.startswith(("s_cmp", "s_cbranch", "s_branch", "s_waitcnt", "s_barrier", "s_endpgm", "s_setprio", "s_sleep", "s_bitcmp")):
            i.r = set().union(*[R(k) for k in range(len(ops))]) if ops else set()
        else:
            i.w = R(0); i.r = set().union(*[R(k) for k in range(1, len(ops))]) if len(ops) > 1 else set()
    return i

def need(p, c):
    n = 0
    vw = {x for x in p.w if x[0] in "va"}
    sw = {x for x in p.w if x[0] == "s" or x == ("x", "vcc")}
    if p.kind == "valu":
        if c.kind == "mfma" and vw & c.r: n = max(n, 2)
        if p.mn.startswith(TRANS) and c.kind == "valu" and not c.mn.startswith(TRANS) and vw & c.r: n = max(n, 1)
        if p.mn.startswith(TRANS) and c.kind in ("vmem", "ds") and vw & c.r: n = max(n, 1)
        if c.kind == "valu" and c.mn.startswith(("v_readfirstlane", "v_readlane")) and vw & c.r: n = max(n, 1)
        if c.kind == "valu" and (c.mn.startswith("v_permlane") or "dpp" in c.text or "row_" in c.text or "quad_perm" in c.text) and vw & c.r: n = max(n, 2)
        if c.kind == "vmem" and sw & c.r: n = max(n, 5)
        if c.kind == "valu" and sw & c.r: n = max(n, 4 if c.mn.startswith(("v_readlane", "v_writelane")) else 2)
        if ("sdwa" in p.mn or "op_sel:" in p.text and not p.mn.startswith("v_pk")) and c.kind == "valu" and vw & (c.r | c.w): n = max(n, 1)
        if ("x", "exec") in p.w: n = max(n, 5)
    if p.kind == "mfma":
        t = {2: 0, 4: 1, 8: 2}[p.p]
        if c.kind == "mfma":
            if p.w & c.srcAB: n = max(n, (5, 8, 12)[t])
            if p.w & c.srcC:
                if p.w == c.srcC and p.p == c.p: n = max(n, (2, 0, 0)[t])
                else: n = max(n, (4, 6, 10)[t])
            elif p.w & c.w:
                if p.p != c.p: n = max(n, (4, 6, 10)[t])
        elif c.kind in ("valu", "vmem", "ds"):
            if p.w & (c.r | c.w): n = max(n, (5, 8, 12)[t])
            if c.kind == "valu" and p.srcC & c.w: n = max(n, (1, 3, 7)[t])
    if p.kind == "salu":
        if ("x", "m0") in p.w and c.kind == "vmem" and getattr(c, "lds", False): n = max(n, 1)
    if p.kind == "vmem" and hasattr(p, "data") and len(p.data) >= 3:
        if p.data & c.w: n = max(n, 2 if c.kind == "valu" else 1)
    return n

def check_hazards(text, verbose=True):
    lines = text.split("\n")
    ins = []; labels = {}
    for ln in lines:
        s = ln.split(";")[0].strip()
        if s.endswith(":") and not s.startswith("."):
            labels[s[:-1]] = len(ins)
        elif s.endswith(":"):
            labels[s[:-1]] = len(ins)
        else:
            i = parse(ln)
            if i: ins.append(i)
    def succ(k):
        i = ins[k]
        if i.mn == "s_endpgm": return []
        if i.mn == "s_branch": return [labels[i.ops[0]]]
        if i.mn == "s_call_b64": return [labels[i.ops[1]]]
        if i.mn == "s_setpc_b64": return [j + 1 for j, x in enumerate(ins) if x.mn == "s_call_b64"]
        if i.mn.startswith("s_cbranch"): return [k + 1, labels[i.ops[0]]]
        return [k + 1]
    bad = []
    for k, p in enumerate(ins):
        if p.kind not in ("valu", "mfma", "salu", "vmem"): continue
        lim = 12 if p.kind == "mfma" else 5
        stack = [(n, 0) for n in succ(k)]
        seen = {}
        while stack:
            n, d = stack.pop()
            if n >= len(ins) or d >= lim: continue
            if seen.get(n, 99) <= d: continue
            seen[n] = d
            c = ins[n]
            req = need(p, c)
            if req > d: bad.append((p.text, c.text, req, d))
            for m in succ(n): stack.append((m, d + c.ws))
    if verbose:
        for b in bad: print("HAZARD: [%s] -> [%s] need %d have %d" % b)
    return bad
```

```python
import sys, math
from asmlib import *

NAME = "sequential_preLN__softmax_full_mha__dense_activation_silu__prompt"
T, D, F, H, DH = 2048, 640, 1728, 32, 20
WS_Q = 0
WS_KV = WS_Q + H * 64 * 1280
WS_O = WS_KV + H * 64 * 2560
WS_H = WS_O + 64 * 40 * 1024
WS_H1 = WS_H + 64 * 40 * 1024
WS_WO = WS_H1 + 64 * 108 * 1024
WS_W2 = WS_WO + 8 * 20 * 5 * 1024
WS_END = WS_W2 + 8 * 54 * 5 * 1024
KA = dict(x=0, wqkv=8, wo=16, bx=24, w1=32, w2=40, out=48, dbg=56, ws=64)
QSCALE = DH ** -0.5 * math.log2(math.e)
import struct
def fbits(x): return "0x%08x" % struct.unpack("<I", struct.pack("<f", x))[0]

def kernel_begin(a, name):
    a(f".globl {name}\n.p2align 8\n.type {name},@function")
    a.label(name)
    a.reset_regs(1, 4)

def kernel_desc(name, nv, ns):
    nv = max(nv, 8)
    acc = (nv + 3) // 4 * 4
    return f""".p2align 6
.amdhsa_kernel {name}
  .amdhsa_next_free_vgpr {nv}
  .amdhsa_next_free_sgpr {max(ns, 16)}
  .amdhsa_accum_offset {acc}
  .amdhsa_group_segment_fixed_size 0
  .amdhsa_kernarg_size 72
  .amdhsa_user_sgpr_count 2
  .amdhsa_user_sgpr_kernarg_segment_ptr 1
  .amdhsa_system_sgpr_workgroup_id_x 1
.end_amdhsa_kernel
"""

def load_ptr(a, srd, key):
    a(f"s_load_dwordx2 {sr(srd,2)}, s[0:1], {KA[key]}")
def fin_srd(a, srd, nbytes):
    a(f"s_mov_b32 s{srd+2}, {nbytes}\ns_mov_b32 s{srd+3}, 0x20000")

def gemm128(a, name, mode):
    qkv = mode == "qkv"
    ldw = 3840 if qkv else 3456
    nwg = 240 if qkv else 224
    SLOT = 32768
    STAT = 4 * SLOT
    kernel_begin(a, name)
    sX = a.s(4); sW = a.s(4); sO = a.s(4)
    sw = a.s(); swm = a.s(); swn = a.s(); srb = a.s(); scb = a.s()
    sKX = a.s(); sKW = a.s(); sDm = a.s(); sRd = a.s(); sCnt = a.s(); sT = a.s(); sT2 = a.s(); sXrec = a.s()
    smask = a.s()
    a(f"s_cmp_ge_u32 s2, {nwg}\ns_cbranch_scc1 {name}_end")
    load_ptr(a, sX, "x" if qkv else "ws"); load_ptr(a, sW, "wqkv" if qkv else "w1"); load_ptr(a, sO, "ws")
    vl = a.v(); vt = a.v(); vh = a.v(); v1 = a.v(); v2 = a.v(); v3 = a.v()
    a(f"""v_lshrrev_b32 v{v1}, 6, v0
    v_and_b32 v{vl}, 63, v0
    v_readfirstlane_b32 s{sw}, v{v1}
    v_and_b32 v{vt}, 31, v0
    v_bfe_u32 v{vh}, v0, 5, 1
    s_and_b32 s{sT}, s2, 7
    s_lshr_b32 s{sT2}, s2, 3""")
    if qkv:
        a(f"""s_and_b32 s{scb}, s{sT}, 1
        s_mul_i32 s{scb}, s{scb}, 30
        s_add_u32 s{sT2}, s{sT2}, s{scb}
        s_lshr_b32 s{scb}, s{sT2}, 2
        s_and_b32 s{sT2}, s{sT2}, 3
        s_lshr_b32 s{srb}, s{sT}, 1
        s_lshl_b32 s{srb}, s{srb}, 2
        s_add_u32 s{srb}, s{srb}, s{sT2}""")
    else:
        a(f"""s_lshr_b32 s{scb}, s{sT2}, 1
        s_and_b32 s{sT2}, s{sT2}, 1
        s_lshl_b32 s{srb}, s{sT}, 1
        s_add_u32 s{srb}, s{srb}, s{sT2}""")
    a(f"s_lshr_b32 s{swm}, s{sw}, 1\ns_and_b32 s{swn}, s{sw}, 1")
    vXd = [a.v() for _ in range(4 if qkv else 1)]
    vWd = [a.v() for _ in range(4)]
    if qkv:
        a(f"""s_lshl_b32 s{sT}, s{srb}, 2
        s_add_u32 s{sT}, s{sT}, s{sw}
        s_mul_i32 s{sT}, s{sT}, {32*1280}
        v_bfe_u32 v{v1}, v0, 2, 3
        v_mul_u32_u24 v{v1}, 1280, v{v1}
        v_lshl_add_u32 v{v1}, v{vh}, 6, v{v1}
        v_add_u32 v{v1}, s{sT}, v{v1}
        v_bfe_u32 v{v2}, v0, 4, 1
        v_and_b32 v{v3}, 3, v0
        v_xor_b32 v{v2}, v{v2}, v{v3}""")
        for p in range(4):
            a(f"""v_xor_b32 v{v3}, {(2*p)&3}, v{v2}
            v_lshl_add_u32 v{vXd[p]}, v{v3}, 4, v{v1}
            v_add_u32 v{vXd[p]}, {p*8*1280}, v{vXd[p]}""")
        xbytes = T * D * 2
    else:
        a(f"""s_lshl_b32 s{sT}, s{srb}, 2
        s_add_u32 s{sT}, s{sT}, s{sw}
        s_mul_i32 s{sT}, s{sT}, {40*1024}
        s_add_u32 s{sT}, s{sT}, {WS_H}
        v_lshlrev_b32 v{v1}, 4, v{vl}
        v_add_u32 v{vXd[0]}, s{sT}, v{v1}""")
        xbytes = WS_END
    a(f"""s_mul_i32 s{sT}, s{sw}, {16*ldw}
    s_lshl_b32 s{sT2}, s{scb}, 8
    s_add_u32 s{sT}, s{sT}, s{sT2}
    v_bfe_u32 v{v1}, v0, 2, 2
    v_mul_u32_u24 v{v1}, {ldw}, v{v1}
    v_bfe_u32 v{v2}, v0, 4, 2
    v_lshl_add_u32 v{v1}, v{v2}, 6, v{v1}
    v_and_b32 v{v2}, 3, v0
    v_lshl_add_u32 v{v1}, v{v2}, 4, v{v1}
    v_add_u32 v{vWd[0]}, s{sT}, v{v1}""")
    for p in range(1, 4):
        a(f"v_add_u32 v{vWd[p]}, {p*4*ldw}, v{vWd[0]}")
    a("s_waitcnt lgkmcnt(0)")
    fin_srd(a, sX, xbytes); fin_srd(a, sW, D * ldw); fin_srd(a, sO, WS_END)
    a(f"""s_mov_b32 s{sKX}, 0
    s_mov_b32 s{sKW}, 0
    s_lshl_b32 s{sDm}, s{sw}, 12""")
    xstep = 128 if qkv else 4096
    def dma(i):
        if i < 4:
            if qkv:
                return [f"s_add_u32 m0, s{sDm}, {i*1024}", f"buffer_load_dwordx4 v{vXd[i]}, {sr(sX,4)}, s{sKX} offen lds"]
            return [f"s_mov_b32 m0, s{sDm}", f"buffer_load_dwordx4 v{vXd[0]}, {sr(sX,4)}, s{sKX} offen offset:{i*1024} lds"]
        p = i - 4
        return [f"s_add_u32 m0, s{sDm}, {16384+p*1024}", f"buffer_load_dwordx4 v{vWd[p]}, {sr(sW,4)}, s{sKW} offen lds"]
    def dma_adv():
        return [f"s_add_u32 s{sKX}, s{sKX}, {xstep}", f"s_add_u32 s{sKW}, s{sKW}, {64*ldw}",
                f"s_add_u32 s{sDm}, s{sDm}, {SLOT}", f"s_and_b32 s{sDm}, s{sDm}, {4*SLOT-1}"]
    a(f"s_mov_b32 s{sCnt}, 3")
    a.label(f"{name}_pro")
    for i in (0, 4, 1, 5, 2, 6, 3, 7):
        m, l = dma(i); a(m); a("s_nop 0"); a(l)
    a("\n".join(dma_adv()))
    a(f"s_sub_u32 s{sCnt}, s{sCnt}, 1\ns_cmp_lg_u32 s{sCnt}, 0\ns_cbranch_scc1 {name}_pro")
    nXa = 4 if qkv else 2
    bX = [a.v() for _ in range(nXa)]; bW = [a.v() for _ in range(2)]
    rX = [a.v() for _ in range(nXa)]; rW = [a.v() for _ in range(2)]
    stau = a.s(); snb = a.s()
    a(f"""s_lshl_b32 s{stau}, s{swm}, 1
    s_add_u32 s{stau}, s{stau}, s{swn}
    s_lshl_b32 s{snb}, s{swn}, 1
    s_add_u32 s{snb}, s{snb}, s{swm}
    s_lshl_b32 s{sT}, s{stau}, 12""")
    if qkv:
        a(f"""v_lshrrev_b32 v{v1}, 3, v{vt}
        v_lshlrev_b32 v{v1}, 10, v{v1}
        v_and_b32 v{v2}, 7, v{vt}
        v_lshl_add_u32 v{v1}, v{v2}, 6, v{v1}
        v_bfe_u32 v{v2}, v{vt}, 2, 2
        v_xor_b32 v{v2}, v{v2}, v{vh}
        v_lshl_add_u32 v{v1}, v{v2}, 4, v{v1}
        v_add_u32 v{bX[0]}, s{sT}, v{v1}
        v_xor_b32 v{bX[1]}, 32, v{bX[0]}
        v_xor_b32 v{bX[2]}, 0x1000, v{bX[0]}
        v_xor_b32 v{bX[3]}, 0x1000, v{bX[1]}""")
    else:
        a(f"""v_lshlrev_b32 v{v1}, 4, v{vl}
        v_add_u32 v{bX[0]}, s{sT}, v{v1}
        v_xor_b32 v{bX[1]}, 0x1000, v{bX[0]}""")
    a(f"""s_lshl_b32 s{sT}, s{snb}, 8
    s_add_u32 s{sT}, s{sT}, 16384
    v_bfe_u32 v{v1}, v0, 2, 2
    v_lshlrev_b32 v{v1}, 6, v{v1}
    v_bfe_u32 v{v2}, v0, 4, 1
    v_lshl_add_u32 v{v1}, v{v2}, 5, v{v1}
    v_and_b32 v{v2}, 3, v0
    v_lshl_add_u32 v{v1}, v{v2}, 3, v{v1}
    v_lshl_add_u32 v{v1}, v{vh}, {11 if qkv else 10}, v{v1}
    v_add_u32 v{bW[0]}, s{sT}, v{v1}
    v_xor_b32 v{bW[1]}, 0x100, v{bW[0]}""")
    estr = 1024 if qkv else 2048
    for r, b in zip(rX + rW, bX + bW): a(f"v_mov_b32 v{r}, v{b}")
    fX = [[a.v(4) for _ in range(2)] for _ in range(2)]
    fW = [[a.v(4) for _ in range(2)] for _ in range(2)]
    acc = [[a.v(16) for _ in range(2)] for _ in range(2)]
    sel = a.v(4); cs = a.v(4)
    st = [a.v() for _ in range(4)]
    tlo = [a.v() for _ in range(2)]; thi = [a.v() for _ in range(2)]
    for r in [x + i for x in fX[1] + fW[1] for i in range(4)] + [x + i for row in acc for x in row for i in range(16)] + [cs + i for i in range(4)] + st:
        a(f"v_mov_b32 v{r}, 0")
    a(f"""v_and_b32 v{v1}, 15, v0
    v_bfe_u32 v{v2}, v0, 4, 1
    v_cmp_eq_u32 vcc, v{v1}, v{v2}
    v_mov_b32 v{v3}, 0x3f803f80
    s_mov_b32 s{smask}, 0xffff0000
    v_cndmask_b32 v{sel}, 0, v{v3}, vcc
    v_cndmask_b32 v{sel+1}, 0, v{v3}, vcc
    v_cndmask_b32 v{sel+2}, 0, v{v3}, vcc
    v_cndmask_b32 v{sel+3}, 0, v{v3}, vcc""")
    if qkv:
        vSt = [a.v() for _ in range(8)]
        sTok = [a.s() for _ in range(4)]
        isK = a.s()
        a(f"""s_cmp_ge_u32 s{scb}, 10
        s_cbranch_scc1 {name}_addrV
        s_cmp_ge_u32 s{scb}, 5
        s_cselect_b32 s{isK}, 1, 0
        s_cselect_b32 s{sT}, 5, 0
        s_sub_u32 s{sT}, s{scb}, s{sT}
        s_lshl_b32 s{sT}, s{sT}, 5""")
        hs = a.s(); tp = a.v();
        a(f"""s_lshl_b32 s{hs}, {64*1280}, s{isK}
        s_mul_i32 s{sT2}, s{isK}, 12
        v_lshrrev_b32 v{v1}, 1, v{vt}
        v_xor_b32 v{v1}, v{v1}, v{vt}
        v_bfe_u32 v{v1}, v{v1}, 2, 1
        v_mul_u32_u24 v{v1}, s{sT2}, v{v1}
        v_xor_b32 v{tp}, v{v1}, v{vt}""")
        for wi in range(2):
            for g in range(4):
                r = vSt[wi*4+g]
                a(f"""s_xor_b32 s{sT2}, s{snb}, {wi}
                s_lshl_b32 s{sT2}, s{sT2}, 3
                s_add_u32 s{sT2}, s{sT2}, s{sT}
                s_add_u32 s{sT2}, s{sT2}, {2*g}
                v_add_u32 v{v1}, s{sT2}, v{vh}
                v_mul_u32_u24 v{v2}, 13108, v{v1}
                v_lshrrev_b32 v{v2}, 16, v{v2}
                v_mul_u32_u24 v{v3}, 5, v{v2}
                v_sub_u32 v{v1}, v{v1}, v{v3}
                v_mul_lo_u32 v{v2}, v{v2}, s{hs}
                v_and_b32 v{v3}, 1, v{v1}
                v_lshlrev_b32 v{v3}, 9, v{v3}
                v_lshl_add_u32 v{v3}, v{tp}, 4, v{v3}
                v_bfe_u32 v{r}, v{v1}, 1, 1
                v_lshl_add_u32 v{v3}, v{r}, 3, v{v3}
                v_lshlrev_b32 v{r}, 3, v{tp}
                v_add_u32 v{r}, 1024, v{r}
                v_cmp_eq_u32 vcc, 4, v{v1}
                s_nop 1
                v_cndmask_b32 v{r}, v{v3}, v{r}, vcc
                v_add_u32 v{r}, v{r}, v{v2}""")
        for xi in range(2):
            a(f"""s_xor_b32 s{sT}, s{stau}, {xi}
            s_lshl_b32 s{sT2}, s{srb}, 2
            s_add_u32 s{sT}, s{sT}, s{sT2}
            s_mul_i32 s{sT2}, s{sT}, 1280
            s_add_u32 s{sT2}, s{sT2}, {WS_Q}
            s_sub_u32 s{sT}, s{sT}, 2
            s_and_b32 s{sT}, s{sT}, 63
            s_mul_i32 s{sT}, s{sT}, 2560
            s_add_u32 s{sT}, s{sT}, {WS_KV}
            s_cmp_eq_u32 s{isK}, 1
            s_cselect_b32 s{sTok[xi]}, s{sT}, s{sT2}""")
        a(f"s_branch {name}_addrdone")
        a.label(f"{name}_addrV")
        for wi in range(2):
            r = vSt[wi]
            a(f"""s_xor_b32 s{sT2}, s{snb}, {wi}
            s_lshl_b32 s{sT2}, s{sT2}, 5
            s_sub_u32 s{sT}, s{scb}, 10
            s_lshl_b32 s{sT}, s{sT}, 7
            s_add_u32 s{sT2}, s{sT2}, s{sT}
            v_add_u32 v{v1}, s{sT2}, v{vt}
            v_mul_u32_u24 v{v2}, 3277, v{v1}
            v_lshrrev_b32 v{v2}, 16, v{v2}
            v_mul_u32_u24 v{v3}, 20, v{v2}
            v_sub_u32 v{v1}, v{v1}, v{v3}
            v_mul_u32_u24 v{v2}, {64*2560}, v{v2}
            v_lshl_add_u32 v{v2}, v{v1}, 4, v{v2}
            v_mul_u32_u24 v{v3}, 320, v{vh}
            v_add_u32 v{r}, v{v2}, v{v3}""")
        for i in range(2, 8): a(f"v_mov_b32 v{vSt[i]}, 0")
        for xi in range(2):
            a(f"""s_xor_b32 s{sT}, s{stau}, {xi}
            s_lshl_b32 s{sT2}, s{srb}, 2
            s_add_u32 s{sT}, s{sT}, s{sT2}
            s_mul_i32 s{sT2}, s{sT}, 2560
            s_add_u32 s{sTok[2+xi]}, s{sT2}, {WS_KV+1920}
            s_sub_u32 s{sT}, s{sT}, 1
            s_and_b32 s{sT}, s{sT}, 63
            s_mul_i32 s{sT}, s{sT}, 2560
            s_add_u32 s{sTok[xi]}, s{sT}, {WS_KV+1280}""")
        a.label(f"{name}_addrdone")
    else:
        vSt = [a.v()]
        sTok = [a.s() for _ in range(4)]
        a(f"v_lshlrev_b32 v{vSt[0]}, 4, v{vl}")
        for xi in range(2):
            for wi in range(2):
                a(f"""s_xor_b32 s{sT}, s{stau}, {xi}
                s_lshl_b32 s{sT2}, s{srb}, 2
                s_add_u32 s{sT}, s{sT}, s{sT2}
                s_mul_i32 s{sT}, s{sT}, 108
                s_xor_b32 s{sT2}, s{snb}, {wi}
                s_lshl_b32 s{sT2}, s{sT2}, 1
                s_add_u32 s{sT}, s{sT}, s{sT2}
                s_lshl_b32 s{sT2}, s{scb}, 3
                s_add_u32 s{sT}, s{sT}, s{sT2}
                s_lshl_b32 s{sT}, s{sT}, 10
                s_add_u32 s{sTok[xi*2+wi]}, s{sT}, {WS_H1}""")
    a(f"s_mov_b32 s{sRd}, 0\ns_mov_b32 s{sCnt}, 0")

    def reads(s, buf):
        L = []
        def xr(xi):
            if qkv: return f"ds_read_b128 {vr(fX[buf][xi],4)}, v{rX[xi*2+(s&1)]} offset:{(s>>1)*512}"
            return f"ds_read_b128 {vr(fX[buf][xi],4)}, v{rX[xi]} offset:{s*1024}"
        def wr(wi, e): return f"ds_read_b64_tr_b16 {vr(fW[buf][wi]+2*e,2)}, v{rW[wi]} offset:{s*4096+e*estr}"
        return [xr(0), wr(0,0), wr(0,1), wr(1,0), wr(1,1), xr(1)]
    def stats(buf):
        L = []
        for i in range(4):
            f = fX[buf][0] + i; lo = tlo[i&1]; hi = thi[i&1]
            L += [f"v_lshlrev_b32 v{lo}, 16, v{f}", f"v_and_b32 v{hi}, s{smask}, v{f}",
                  f"v_add_f32 v{st[0]}, v{st[0]}, v{lo}", f"v_add_f32 v{st[1]}, v{st[1]}, v{hi}",
                  f"v_fmac_f32 v{st[2]}, v{lo}, v{lo}", f"v_fmac_f32 v{st[3]}, v{hi}, v{hi}"]
        return L
    def mf(buf, xi, wi, vorient):
        A, B = (fX[buf][xi], fW[buf][wi]) if vorient else (fW[buf][wi], fX[buf][xi])
        return f"v_mfma_f32_32x32x16_bf16 {vr(acc[xi][wi],16)}, {vr(A,4)}, {vr(B,4)}, {vr(acc[xi][wi],16)}"
    def step(buf, vorient, rd, dmas, extra_end=[]):
        sv = stats(buf)
        order = [(0,0), (0,1), (1,0), (1,1)]
        for j, (xi, wi) in enumerate(order):
            d = dmas[j-2] if j >= 2 and dmas else None
            if d: a(d[0])
            a(mf(buf, xi, wi, vorient))
            if d: a(d[1])
            for x in rd[2*j:2*j+2]: a(x)
            for x in sv[6*j:6*j+6]: a(x)
        a(f"v_mfma_f32_16x16x32_bf16 {vr(cs,4)}, {vr(sel,4)}, {vr(fW[buf][0],4)}, {vr(cs,4)}")
        for x in extra_end: a(x)
    def mainloop(tag, vorient):
        a(".p2align 3")
        a.label(f"{name}_loop{tag}")
        a(f"s_cmp_ge_u32 s{sCnt}, 7\ns_cselect_b32 s{sX+2}, 0, s{sX+2}")
        a("s_waitcnt vmcnt(16) lgkmcnt(0)\ns_barrier")
        step(1, vorient, reads(0, 0), [dma(0), dma(4)])
        a("s_waitcnt lgkmcnt(0)")
        step(0, vorient, reads(1, 1), [dma(1), dma(5)])
        a("s_waitcnt lgkmcnt(0)")
        step(1, vorient, reads(2, 0), [dma(2), dma(6)], [f"s_add_u32 s{sRd}, s{sRd}, {SLOT}", f"s_and_b32 s{sRd}, s{sRd}, {4*SLOT-1}"])
        a("s_waitcnt lgkmcnt(0)")
        upd = [f"v_add_u32 v{r}, s{sRd}, v{b}" for r, b in zip(rX + rW, bX + bW)]
        step(0, vorient, reads(3, 1), [dma(3), dma(7)], upd + dma_adv())
        a(f"s_add_u32 s{sCnt}, s{sCnt}, 1\ns_cmp_lt_u32 s{sCnt}, 10\ns_cbranch_scc1 {name}_loop{tag}")
        a("s_waitcnt lgkmcnt(0)")
        step(1, vorient, [], None)
    def finish_stats():
        a(f"""v_add_f32 v{st[0]}, v{st[0]}, v{st[1]}
        v_add_f32 v{st[2]}, v{st[2]}, v{st[3]}
        v_mov_b32 v{st[1]}, v{st[0]}
        v_mov_b32 v{st[3]}, v{st[2]}
        s_lshl_b32 s{sT}, s{stau}, 7
        s_add_u32 s{sT}, s{sT}, {STAT}
        v_permlane32_swap_b32 v{st[0]}, v{st[1]}
        v_permlane32_swap_b32 v{st[2]}, v{st[3]}
        v_add_f32 v{st[0]}, v{st[0]}, v{st[1]}
        v_add_f32 v{st[2]}, v{st[2]}, v{st[3]}
        v_mul_f32 v{st[0]}, {fbits(1.0/D)}, v{st[0]}
        v_mul_f32 v{st[2]}, {fbits(1.0/D)}, v{st[2]}
        v_fma_f32 v{st[2]}, -v{st[0]}, v{st[0]}, v{st[2]}
        v_max_f32 v{st[2]}, 0, v{st[2]}
        v_add_f32 v{st[2]}, {fbits(1e-5)}, v{st[2]}
        v_rsq_f32 v{st[2]}, v{st[2]}
        v_cmp_eq_u32 vcc, 0, v{vh}
        v_lshlrev_b32 v{v1}, 2, v{vt}
        v_lshl_add_u32 v{v1}, v{vh}, 9, v{v1}
        v_add_u32 v{v1}, s{sT}, v{v1}
        v_cndmask_b32 v{st[0]}, v{st[2]}, v{st[0]}, vcc
        ds_write_b32 v{v1}, v{st[0]}
        s_lshl_b32 s{sT}, s{snb}, 7
        s_add_u32 s{sT}, s{sT}, {STAT+1024}
        v_lshlrev_b32 v{v2}, 2, v{vl}
        v_add_u32 v{v3}, {STAT+1536}, v{v2}
        v_add_u32 v{v2}, s{sT}, v{v2}
        v_cmp_gt_u32 vcc, 16, v{vl}
        s_nop 1
        v_cndmask_b32 v{v2}, v{v3}, v{v2}, vcc
        ds_write_b32 v{v2}, v{cs}
        ds_write_b32 v{v2}, v{cs+1} offset:64
        s_waitcnt lgkmcnt(0)
        s_barrier""")
    big = a.v(64)
    pm = a.v(2); pr = a.v(2); pz = a.v(2)
    def epi_tok(silu):
        a(f"v_lshlrev_b32 v{v1}, 4, v{vh}\nv_lshlrev_b32 v{v2}, 2, v{vt}")
        for wi in range(2):
            a(f"""s_xor_b32 s{sT}, s{snb}, {wi}
            s_lshl_b32 s{sT}, s{sT}, 7
            s_add_u32 s{sT}, s{sT}, {STAT+1024}
            v_add_u32 v{v3}, s{sT}, v{v1}""")
            for g in range(4):
                a(f"ds_read_b128 {vr(big+16*wi+4*g,4)}, v{v3} offset:{32*g}")
        for xi in range(2):
            a(f"""s_xor_b32 s{sT}, s{stau}, {xi}
            s_lshl_b32 s{sT}, s{sT}, 7
            s_add_u32 s{sT}, s{sT}, {STAT}
            v_add_u32 v{v3}, s{sT}, v{v2}
            ds_read_b32 v{pm+xi}, v{v3}
            ds_read_b32 v{pr+xi}, v{v3} offset:512""")
        a("s_waitcnt lgkmcnt(0)")
        if not silu:
            a(f"""s_cmp_eq_u32 s{isK}, 1
            s_cselect_b32 s{sT}, 1.0, {fbits(QSCALE)}
            v_mul_f32 v{pr}, s{sT}, v{pr}
            v_mul_f32 v{pr+1}, s{sT}, v{pr+1}""")
        else:
            a(f"""v_mul_f32 v{pz}, {fbits(-math.log2(math.e))}, v{pr}
            v_mul_f32 v{pz+1}, {fbits(-math.log2(math.e))}, v{pr+1}
            s_cmp_eq_u32 s{scb}, 13
            s_cselect_b32 s{sT}, 1, 0
            s_and_b32 s{sT}, s{sT}, s{swn}
            s_cbranch_scc1 {name}_end""")
        tmp = big + 32
        for xi in range(2):
            os_ = f"op_sel:[{xi},0,0] op_sel_hi:[{xi},1,1]"
            om = f"op_sel:[{xi},0] op_sel_hi:[{xi},1]"
            for wi in range(2):
                A = acc[xi][wi]
                for i in range(0, 16, 2):
                    a(f"v_pk_fma_f32 {vr(A+i,2)}, {vr(pm,2)}, {vr(big+16*wi+i,2)}, {vr(A+i,2)} {os_} neg_lo:[1,0,0] neg_hi:[1,0,0]")
                if not silu:
                    for i in range(0, 16, 2):
                        a(f"v_pk_mul_f32 {vr(A+i,2)}, {vr(pr,2)}, {vr(A+i,2)} {om}")
                    for g in range(4):
                        a(f"v_cvt_pk_bf16_f32 v{A+4*g}, v{A+4*g}, v{A+4*g+1}\nv_cvt_pk_bf16_f32 v{A+4*g+1}, v{A+4*g+2}, v{A+4*g+3}")
                        a(f"buffer_store_dwordx2 {vr(A+4*g,2)}, v{vSt[wi*4+g]}, {sr(sO,4)}, s{sTok[xi]} offen")
                else:
                    for i in range(0, 16, 2):
                        a(f"v_pk_mul_f32 {vr(tmp+i,2)}, {vr(pz,2)}, {vr(A+i,2)} {om}")
                    for i in range(16): a(f"v_exp_f32 v{tmp+i}, v{tmp+i}")
                    for i in range(0, 16, 2):
                        a(f"v_pk_mul_f32 {vr(A+i,2)}, {vr(pr,2)}, {vr(A+i,2)} {om}")
                    for i in range(0, 16, 2):
                        a(f"v_pk_add_f32 {vr(tmp+i,2)}, {vr(tmp+i,2)}, 1.0 op_sel_hi:[1,0]")
                    for i in range(16): a(f"v_rcp_f32 v{tmp+i}, v{tmp+i}")
                    a("s_nop 0")
                    for i in range(0, 16, 2):
                        a(f"v_pk_mul_f32 {vr(A+i,2)}, {vr(A+i,2)}, {vr(tmp+i,2)}")
                    for i in range(8):
                        a(f"v_cvt_pk_bf16_f32 v{A+i}, v{A+2*i}, v{A+2*i+1}")
                    for s_ in range(2):
                        a(f"buffer_store_dwordx4 {vr(A+4*s_,4)}, v{vSt[0]}, {sr(sO,4)}, s{sTok[xi*2+wi]} offen offset:{1024*s_}")
    def epi_feat():
        a(f"v_lshlrev_b32 v{v1}, 4, v{vh}\nv_lshlrev_b32 v{v2}, 2, v{vt}")
        for xi in range(2):
            a(f"""s_xor_b32 s{sT}, s{stau}, {xi}
            s_lshl_b32 s{sT}, s{sT}, 7
            s_add_u32 s{sT}, s{sT}, {STAT}
            v_add_u32 v{v3}, s{sT}, v{v1}""")
            for g in range(4):
                a(f"ds_read_b128 {vr(big+32*xi+4*g,4)}, v{v3} offset:{32*g}")
                a(f"ds_read_b128 {vr(big+32*xi+16+4*g,4)}, v{v3} offset:{512+32*g}")
            if xi == 0: a("s_waitcnt lgkmcnt(4)")
        for wi in range(2):
            a(f"""s_xor_b32 s{sT}, s{snb}, {wi}
            s_lshl_b32 s{sT}, s{sT}, 7
            s_add_u32 s{sT}, s{sT}, {STAT+1024}
            v_add_u32 v{v3}, s{sT}, v{v2}
            ds_read_b32 v{pm+wi}, v{v3}""")
        a("s_waitcnt lgkmcnt(0)")
        for xi in range(2):
            for wi in range(2):
                A = acc[xi][wi]
                os_ = f"op_sel:[{wi},0,0] op_sel_hi:[{wi},1,1]"
                for i in range(0, 16, 2):
                    a(f"v_pk_fma_f32 {vr(A+i,2)}, {vr(pm,2)}, {vr(big+32*xi+i,2)}, {vr(A+i,2)} {os_} neg_lo:[1,0,0] neg_hi:[1,0,0]")
                for i in range(0, 16, 2):
                    a(f"v_pk_mul_f32 {vr(A+i,2)}, {vr(big+32*xi+16+i,2)}, {vr(A+i,2)}")
                for i in range(8):
                    a(f"v_cvt_pk_bf16_f32 v{A+i}, v{A+2*i}, v{A+2*i+1}")
                for j in range(2):
                    a(f"buffer_store_dwordx4 {vr(A+4*j,4)}, v{vSt[wi]}, {sr(sO,4)}, s{sTok[2*j+xi]} offen")
    if qkv:
        a(f"s_cmp_ge_u32 s{scb}, 10\ns_cbranch_scc1 {name}_loopV")
        mainloop("T", False); finish_stats(); epi_tok(False)
        a("s_endpgm")
        mainloop("V", True); finish_stats(); epi_feat()
    else:
        mainloop("T", False); finish_stats(); epi_tok(True)
    a.label(f"{name}_end")
    a("s_endpgm")
    return dict(name=name, grid=nwg, block=256, lds=STAT + 2048, nv=a.maxv, ns=a.maxs)

def attn(a, name):
    SL1 = 32768; ONES = 53248; CH = 20480
    kernel_begin(a, name)
    sO = a.s(4); sWo = a.s(4); sW2 = a.s(4); sR = a.s(4)
    sw = a.s(); shead = a.s(); sqt = a.s(); sT = a.s(); sT2 = a.s(); sT3 = a.s(); sG = a.s(); sDm = a.s(); sCnt = a.s()
    sKV = a.s(); sDst = [a.s(), a.s()]; sm64 = a.s(2); sm2 = a.s(2); sm3 = a.s(2)
    a(f"s_cmp_ge_u32 s2, 256\ns_cbranch_scc1 {name}_end")
    load_ptr(a, sO, "ws"); load_ptr(a, sWo, "wo"); load_ptr(a, sW2, "w2")
    vl = a.v(); vt = a.v(); vh = a.v(); v1 = a.v(); v2 = a.v(); v3 = a.v(); vl16 = a.v(); vidx = a.v(); vones = a.v()
    aK16 = a.v(); aK4 = a.v(); aV = a.v(); xK4 = a.v(); xV = a.v(); gK4 = a.v(); gV = a.v()
    Q16 = a.v(4); Q4 = a.v(2); K4 = a.v(2); K16 = a.v(4); V0 = a.v(4); V1 = a.v(4)
    RP = [a.v(8), a.v(8)]
    S = [a.v(16) for _ in range(4)]
    O = a.v(16)
    a(f"""v_lshrrev_b32 v{v1}, 6, v0
    v_and_b32 v{vl}, 63, v0
    v_readfirstlane_b32 s{sw}, v{v1}
    v_and_b32 v{vt}, 31, v0
    v_bfe_u32 v{vh}, v0, 5, 1
    v_lshlrev_b32 v{vl16}, 4, v{vl}
    s_and_b32 s{shead}, s2, 7
    s_lshl_b32 s{shead}, s{shead}, 2
    s_lshr_b32 s{sT}, s2, 6
    s_add_u32 s{shead}, s{shead}, s{sT}
    s_bfe_u32 s{sqt}, s2, 0x30003
    s_lshl_b32 s{sqt}, s{sqt}, 3
    s_add_u32 s{sqt}, s{sqt}, s{sw}
    s_mul_i32 s{sKV}, s{shead}, {64*2560}
    s_add_u32 s{sKV}, s{sKV}, {WS_KV}
    s_lshl_b32 s{sDm}, s{sw}, 10
    s_add_u32 s{sG}, s{sKV}, s{sDm}
    v_lshlrev_b32 v{gK4}, 3, v{vt}
    v_mul_u32_u24 v{gV}, 320, v{vh}
    v_lshl_add_u32 v{gV}, v{vt}, 4, v{gV}
    s_waitcnt lgkmcnt(0)""")
    fin_srd(a, sO, WS_END); fin_srd(a, sWo, D * D * 2); fin_srd(a, sW2, F * D * 2)
    def dma_chunk(tag):
        a(f"""s_mov_b32 m0, s{sDm}
        s_add_u32 s{sT}, s{sG}, 8192
        buffer_load_dwordx4 v{vl16}, {sr(sO,4)}, s{sG} offen lds
        s_add_u32 m0, s{sDm}, 8192
        s_cmp_ge_u32 s{sw}, 4
        buffer_load_dwordx4 v{vl16}, {sr(sO,4)}, s{sT} offen lds
        s_cbranch_scc1 {name}_nod{tag}
        s_add_u32 m0, s{sDm}, 16384
        s_add_u32 s{sT}, s{sG}, 16384
        buffer_load_dwordx4 v{vl16}, {sr(sO,4)}, s{sT} offen lds""")
        a.label(f"{name}_nod{tag}")
        a(f"s_add_u32 s{sG}, s{sG}, {CH}\ns_xor_b32 s{sDm}, s{sDm}, {SL1}")
    K0 = S[2]
    a(f"""s_lshl_b32 s{sT}, s{shead}, 6
    s_add_u32 s{sT}, s{sT}, s{sqt}
    s_mul_i32 s{sT}, s{sT}, 1280
    s_add_u32 s{sT}, s{sT}, {WS_Q}
    s_add_u32 s{sT2}, s{sKV}, {62*2560}
    s_add_u32 s{sT3}, s{sKV}, {63*2560}
    buffer_load_dwordx4 {vr(Q16,4)}, v{vl16}, {sr(sO,4)}, s{sT} offen
    buffer_load_dwordx2 {vr(Q4,2)}, v{gK4}, {sr(sO,4)}, s{sT} offen offset:1024
    buffer_load_dwordx4 {vr(K0,4)}, v{vl16}, {sr(sO,4)}, s{sT2} offen
    buffer_load_dwordx2 {vr(K0+4,2)}, v{gK4}, {sr(sO,4)}, s{sT2} offen offset:1024
    buffer_load_dwordx4 {vr(K16,4)}, v{vl16}, {sr(sO,4)}, s{sT3} offen
    buffer_load_dwordx2 {vr(K4,2)}, v{gK4}, {sr(sO,4)}, s{sT3} offen offset:1024
    buffer_load_dwordx4 {vr(V0,4)}, v{gV}, {sr(sO,4)}, s{sT3} offen offset:1280""")
    dma_chunk("p")
    sjob = a.s(); su = a.s(); sc = a.s(); sb = a.s(); scbk = a.s(); sE = a.s()
    vg = a.v(); ve0 = a.v(); ve1 = a.v()
    a(f"v_bfe_u32 v{vg}, v0, 4, 2")
    for k in range(2):
        a(f"""s_lshl_b32 s{sjob}, s2, 3
        s_add_u32 s{sjob}, s{sjob}, s{sw}
        s_add_u32 s{sjob}, s{sjob}, {2048*k}
        s_mul_i32 s{su}, s{sjob}, 52429
        s_lshr_b32 s{su}, s{su}, 21
        s_mul_i32 s{sT}, s{su}, 40
        s_sub_u32 s{scbk}, s{sjob}, s{sT}
        s_mul_i32 s{sc}, s{scbk}, 13108
        s_lshr_b32 s{sc}, s{sc}, 16
        s_mul_i32 s{sT}, s{sc}, 5
        s_sub_u32 s{sb}, s{scbk}, s{sT}""")
        a(f"""s_cmp_ge_u32 s{su}, 20
        s_cbranch_scc1 {name}_rw2_{k}
        s_mov_b32 s{sR}, s{sWo}
        s_mov_b32 s{sR+1}, s{sWo+1}
        s_mov_b32 s{sR+2}, {D*D*2}
        s_mul_i32 s{sT}, s{sc}, 20
        s_add_u32 s{sT}, s{sT}, s{su}
        s_mul_i32 s{sT}, s{sT}, 5
        s_add_u32 s{sT}, s{sT}, s{sb}
        s_lshl_b32 s{sT}, s{sT}, 10
        s_add_u32 s{sDst[k]}, s{sT}, {WS_WO}
        s_cmp_ge_u32 s{su}, 16
        s_cbranch_scc1 {name}_rwt_{k}
        s_mul_i32 s{sT}, s{su}, 40
        s_mov_b32 s{sT2}, 20
        s_mov_b32 s{sT3}, 4
        s_mov_b32 s{sE}, 8
        s_branch {name}_rgo_{k}""")
        a.label(f"{name}_rwt_{k}")
        a(f"""s_sub_u32 s{sT}, s{su}, 16
        s_mul_i32 s{sT}, s{sT}, 160
        s_add_u32 s{sT}, s{sT}, 16
        s_mov_b32 s{sT2}, 80
        s_mov_b32 s{sT3}, 40
        s_mov_b32 s{sE}, 20
        s_branch {name}_rgo_{k}""")
        a.label(f"{name}_rw2_{k}")
        a(f"""s_mov_b32 s{sR}, s{sW2}
        s_mov_b32 s{sR+1}, s{sW2+1}
        s_mov_b32 s{sR+2}, {F*D*2}
        s_sub_u32 s{su}, s{su}, 20
        s_mul_i32 s{sT}, s{sc}, 54
        s_add_u32 s{sT}, s{sT}, s{su}
        s_mul_i32 s{sT}, s{sT}, 5
        s_add_u32 s{sT}, s{sT}, s{sb}
        s_lshl_b32 s{sT}, s{sT}, 10
        s_add_u32 s{sDst[k]}, s{sT}, {WS_W2}
        s_cmp_ge_u32 s{su}, 54
        s_cselect_b32 s{sDst[k]}, {WS_END}, s{sDst[k]}
        s_lshl_b32 s{sT}, s{su}, 5
        s_mov_b32 s{sT2}, 16
        s_mov_b32 s{sT3}, 4
        s_mov_b32 s{sE}, 8""")
        a.label(f"{name}_rgo_{k}")
        a(f"""s_mov_b32 s{sR+3}, 0x20000
        v_lshrrev_b32 v{v1}, 1, v{vg}
        v_mul_u32_u24 v{v1}, s{sT2}, v{v1}
        v_and_b32 v{v2}, 1, v{vg}
        v_mul_u32_u24 v{v2}, s{sT3}, v{v2}
        v_add3_u32 v{v1}, v{v1}, v{v2}, s{sT}
        v_mul_u32_u24 v{v1}, 1280, v{v1}
        v_and_b32 v{v2}, 15, v0
        v_lshl_add_u32 v{ve0}, v{v2}, 1, v{v1}
        s_mul_i32 s{sE}, s{sE}, 1280
        s_lshl_b32 s{sT}, s{scbk}, 5
        v_add_u32 v{ve1}, s{sE}, v{ve0}""")
        for j in range(8):
            a(f"buffer_load_ushort v{RP[k]+j}, v{ve1 if j>=4 else ve0}, {sr(sR,4)}, s{sT} offen offset:{(j&3)*1280}")
    a(f"v_mov_b32 v{vones}, 0x3f803f80\nv_mov_b32 v{vidx}, 0xdddd")
    for i in range(4): a(f"v_mov_b32 v{V1+i}, v{vones}")
    a(f"v_lshlrev_b32 v{v1}, 4, v0\nv_add_u32 v{v1}, {ONES}, v{v1}")
    for i in range(3): a(f"ds_write_b128 v{v1}, {vr(V1,4)} offset:{8192*i}")
    a(f"""v_mov_b32 v{aK16}, v{vl16}
    v_cmp_eq_u32 {sr(sm64,2)}, 0, v{vh}
    v_cmp_gt_u32 {sr(sm2,2)}, 20, v{vt}
    v_mov_b32 v{v2}, {SL1}
    v_add_u32 v{v1}, {ONES+256}, v{gK4}
    v_cndmask_b32 v{aK4}, v{v1}, v{gK4}, {sr(sm64,2)}
    v_cndmask_b32 v{xK4}, 0, v{v2}, {sr(sm64,2)}
    v_add_u32 v{v1}, {ONES}, v{gV}
    v_cndmask_b32 v{aV}, v{v1}, v{gV}, {sr(sm2,2)}
    v_cndmask_b32 v{xV}, 0, v{v2}, {sr(sm2,2)}""")
    for i in range(16): a(f"v_mov_b32 v{O+i}, 0")
    for i in range(8): a(f"v_mov_b32 v{S[3]+8+i}, 0")
    a("s_waitcnt vmcnt(16)")
    a(f"""v_cndmask_b32 v{Q4}, 0, v{Q4}, {sr(sm64,2)}
    v_cndmask_b32 v{Q4+1}, 0, v{Q4+1}, {sr(sm64,2)}
    v_cndmask_b32 v{K4}, v{vones}, v{K4}, {sr(sm64,2)}
    v_cndmask_b32 v{K4+1}, v{vones}, v{K4+1}, {sr(sm64,2)}
    v_mfma_f32_32x32x8_bf16 {vr(S[0],16)}, {vr(K0+4,2)}, {vr(Q4,2)}, 0
    v_mfma_f32_32x32x16_bf16 {vr(S[0],16)}, {vr(K0,4)}, {vr(Q16,4)}, {vr(S[0],16)}""")
    for i in range(4): a(f"v_cndmask_b32 v{V0+i}, v{vones}, v{V0+i}, {sr(sm2,2)}")
    a("s_nop 7")
    def rowmax(dst, s, tmp):
        a(f"v_max3_f32 v{dst}, v{s}, v{s+1}, v{s+2}")
        for i in range(3, 15, 2): a(f"v_max3_f32 v{dst}, v{dst}, v{s+i}, v{s+i+1}")
        a(f"""v_max_f32 v{dst}, v{dst}, v{s+15}
        v_mov_b32 v{tmp}, v{dst}
        s_nop 1
        v_permlane32_swap_b32 v{dst}, v{tmp}
        v_max_f32 v{dst}, v{dst}, v{tmp}""")
    rowmax(v1, S[0], v2)
    a(f"""v_sub_f32 v{v1}, 0, v{v1}
    v_cvt_pk_bf16_f32 v{v1}, v{v1}, 0
    v_lshlrev_b32 v{v2}, 16, v{v1}
    v_cndmask_b32 v{Q4}, v{v1}, v{Q4}, {sr(sm64,2)}""")
    for i in range(16): a(f"v_add_f32 v{S[0]+i}, v{v2}, v{S[0]+i}")
    a(f"s_mov_b32 s{sCnt}, 0\ns_waitcnt lgkmcnt(0)\ns_barrier")
    a(".p2align 3")
    a.label(f"{name}_loop")
    a(f"s_cmp_eq_u32 s{sCnt}, 7\ns_cbranch_scc1 {name}_nodl")
    dma_chunk("l")
    def m8(s): a(f"v_mfma_f32_32x32x8_bf16 {vr(s,16)}, {vr(K4,2)}, {vr(Q4,2)}, 0")
    def m16(s): a(f"v_mfma_f32_32x32x16_bf16 {vr(s,16)}, {vr(K16,4)}, {vr(Q16,4)}, {vr(s,16)}")
    def ex(s, x, y):
        for i in range(x, y): a(f"v_exp_f32 v{s+i}, v{s+i}")
    def sm(v, s): a(f"v_smfmac_f32_32x32x32_bf16 {vr(O,16)}, {vr(v,4)}, {vr(s,8)}, v{vidx}")
    for u in range(8):
        cur, nxt, prv = S[u % 4], S[(u+1) % 4], S[(u-1) % 4]
        off = u * 2560
        if u: a("s_waitcnt lgkmcnt(2)")
        m8(nxt); a(f"ds_read_b64 {vr(K4,2)}, v{aK4} offset:{off+1024}")
        ex(cur, 0, 4)
        m16(nxt); a(f"ds_read_b128 {vr(K16,4)}, v{aK16} offset:{off}")
        ex(cur, 4, 8)
        if u: a("s_waitcnt lgkmcnt(2)")
        sm(V1, prv + 8); a(f"ds_read_b128 {vr(V1,4)}, v{aV} offset:{off+1920}")
        ex(cur, 8, 12)
        sm(V0, cur); a(f"ds_read_b128 {vr(V0,4)}, v{aV} offset:{off+1280}")
        ex(cur, 12, 16)
    a(f"""v_xor_b32 v{aK16}, {SL1}, v{aK16}
    v_xor_b32 v{aK4}, v{xK4}, v{aK4}
    v_xor_b32 v{aV}, v{xV}, v{aV}
    s_add_u32 s{sCnt}, s{sCnt}, 1
    s_cmp_lt_u32 s{sCnt}, 8
    s_waitcnt vmcnt(0) lgkmcnt(0)
    s_barrier
    s_cbranch_scc1 {name}_loop""")
    sm(V1, S[3] + 8)
    for k in range(2):
        for j in range(4): a(f"v_lshl_or_b32 v{RP[k]+j}, v{RP[k]+2*j+1}, 16, v{RP[k]+2*j}")
        a(f"buffer_store_dwordx4 {vr(RP[k],4)}, v{vl16}, {sr(sO,4)}, s{sDst[k]} offen")
    a("s_nop 1")
    a(f"v_mul_f32 v{v1}, 0, v{O}")
    for i in range(1, 12): a(f"v_fma_f32 v{v1}, 0, v{O+i}, v{v1}")
    a(f"""v_add_f32 v{v1}, v{v1}, v{O+12}
    v_mov_b32 v{v2}, {fbits(2.0**60)}
    v_mov_b32 v{v3}, {fbits(2.0**-60)}
    v_cmp_lt_f32 vcc, v{v1}, v{v2}
    s_mov_b64 {sr(sm3,2)}, vcc
    v_cmp_gt_f32 vcc, v{v1}, v{v3}
    s_and_b64 vcc, vcc, {sr(sm3,2)}
    s_cmp_eq_u64 vcc, -1
    s_cbranch_scc0 {name}_slow""")
    a.label(f"{name}_fin")
    a(f"v_rcp_f32 v{v1}, v{O+12}\ns_mul_i32 s{sT}, s{sqt}, 40")
    for i in range(12): a(f"v_mul_f32 v{O+i}, v{v1}, v{O+i}")
    for i in range(6): a(f"v_cvt_pk_bf16_f32 v{O+i}, v{O+2*i}, v{O+2*i+1}")
    a(f"""s_add_u32 s{sT2}, s{sT}, s{shead}
    s_lshl_b32 s{sT2}, s{sT2}, 10
    s_add_u32 s{sT2}, s{sT2}, {WS_O}
    buffer_store_dwordx4 {vr(O,4)}, v{vl16}, {sr(sO,4)}, s{sT2} offen
    s_lshr_b32 s{sT2}, s{shead}, 2
    s_add_u32 s{sT}, s{sT}, s{sT2}
    s_add_u32 s{sT}, s{sT}, 32
    s_lshl_b32 s{sT}, s{sT}, 10
    s_bfe_u32 s{sT2}, s{shead}, 0x10001
    s_lshl_b32 s{sT2}, s{sT2}, 9
    s_add_u32 s{sT}, s{sT}, s{sT2}
    s_and_b32 s{sT2}, s{shead}, 1
    s_lshl_b32 s{sT2}, s{sT2}, 3
    s_add_u32 s{sT}, s{sT}, s{sT2}
    s_add_u32 s{sT}, s{sT}, {WS_O}
    v_mov_b32 v{v2}, {WS_END}
    v_cndmask_b32 v{v2}, v{v2}, v{vl16}, {sr(sm64,2)}
    buffer_store_dwordx2 {vr(O+4,2)}, v{v2}, {sr(sO,4)}, s{sT} offen""")
    a.label(f"{name}_end")
    a("s_endpgm")
    a.label(f"{name}_slow")
    vm = K0; valpha = K0 + 1
    a(f"v_cndmask_b32 v{Q4}, 0, v{Q4}, {sr(sm64,2)}\nv_mov_b32 v{vm}, 0xff7fffff\ns_mov_b32 s{sCnt}, 0")
    for i in range(16): a(f"v_mov_b32 v{O+i}, 0")
    a.label(f"{name}_sloop")
    a(f"""s_add_u32 s{sT}, s{sCnt}, 62
    s_and_b32 s{sT}, s{sT}, 63
    s_mul_i32 s{sT}, s{sT}, 2560
    s_add_u32 s{sT}, s{sT}, s{sKV}
    s_add_u32 s{sT2}, s{sCnt}, 63
    s_and_b32 s{sT2}, s{sT2}, 63
    s_mul_i32 s{sT2}, s{sT2}, 2560
    s_add_u32 s{sT2}, s{sT2}, s{sKV}
    s_mul_i32 s{sT3}, s{sCnt}, 2560
    s_add_u32 s{sT3}, s{sT3}, s{sKV}
    buffer_load_dwordx4 {vr(K16,4)}, v{vl16}, {sr(sO,4)}, s{sT} offen
    buffer_load_dwordx2 {vr(K4,2)}, v{gK4}, {sr(sO,4)}, s{sT} offen offset:1024
    buffer_load_dwordx4 {vr(V0,4)}, v{gV}, {sr(sO,4)}, s{sT2} offen offset:1280
    buffer_load_dwordx4 {vr(V1,4)}, v{gV}, {sr(sO,4)}, s{sT3} offen offset:1920
    s_waitcnt vmcnt(0)""")
    m8(S[0]); m16(S[0])
    for i in range(4):
        a(f"v_cndmask_b32 v{V0+i}, v{vones}, v{V0+i}, {sr(sm2,2)}\nv_cndmask_b32 v{V1+i}, v{vones}, v{V1+i}, {sr(sm2,2)}")
    a("s_nop 7")
    rowmax(v1, S[0], v2)
    a(f"""v_max_f32 v{v1}, v{v1}, v{vm}
    v_sub_f32 v{valpha}, v{vm}, v{v1}
    v_exp_f32 v{valpha}, v{valpha}
    v_mov_b32 v{vm}, v{v1}""")
    for i in range(16): a(f"v_sub_f32 v{S[0]+i}, v{S[0]+i}, v{v1}")
    ex(S[0], 0, 16)
    for i in range(16): a(f"v_mul_f32 v{O+i}, v{valpha}, v{O+i}")
    a("s_nop 1")
    sm(V0, S[0]); sm(V1, S[0] + 8)
    a(f"""s_add_u32 s{sCnt}, s{sCnt}, 1
    s_cmp_lt_u32 s{sCnt}, 64
    s_cbranch_scc1 {name}_sloop
    s_nop 11
    s_branch {name}_fin""")
    return dict(name=name, grid=256, block=512, lds=ONES + 24576, nv=a.maxv, ns=a.maxs)

def gemm80(a, name, mode):
    wo = mode == "wo"
    NU = 20 if wo else 54
    NCH = (NU + 3) // 4
    SLOT = 36864; XT = 4 * SLOT
    wsA = WS_O if wo else WS_H1; wsB = WS_WO if wo else WS_W2
    kernel_begin(a, name)
    sA = a.s(4); sB = a.s(4); sO = a.s(4); sX = a.s(4)
    sw = a.s(); srb = a.s(); sc = a.s(); sT = a.s(); sT2 = a.s(); sKA = a.s(); sKB = a.s(); sDm = a.s(); sRd = a.s(); sCnt = a.s(); sH = a.s()
    sKA2 = a.s(); sKB2 = a.s()
    a(f"s_cmp_ge_u32 s2, 256\ns_cbranch_scc1 {name}_end")
    load_ptr(a, sO, "ws"); load_ptr(a, sX, "x" if wo else "out")
    vl = a.v(); vl16 = a.v(); v1 = a.v(); v2 = a.v(); v3 = a.v(); vA = a.v(); vHs = a.v()
    a(f"""v_lshrrev_b32 v{v1}, 6, v0
    v_and_b32 v{vl}, 63, v0
    v_readfirstlane_b32 s{sw}, v{v1}
    v_lshlrev_b32 v{vl16}, 4, v{vl}
    s_and_b32 s{srb}, s2, 7
    s_lshl_b32 s{srb}, s{srb}, 2
    s_bfe_u32 s{sT}, s2, 0x20003
    s_add_u32 s{srb}, s{srb}, s{sT}
    s_lshr_b32 s{sc}, s2, 5""")
    a(f"""v_bfe_u32 v{v1}, v0, 4, 2
    v_lshlrev_b32 v{v1}, 9, v{v1}
    v_bfe_u32 v{v2}, v0, 6, 1
    v_lshl_add_u32 v{v1}, v{v2}, 8, v{v1}
    v_and_b32 v{v3}, 15, v0
    v_lshl_add_u32 v{vA}, v{v3}, 4, v{v1}
    s_lshr_b32 s{sT}, s{sw}, 1
    s_lshl_b32 s{sT2}, s{srb}, 1
    s_add_u32 s{sH}, s{sT}, s{sT2}
    s_mul_i32 s{sT}, s{sH}, {NU*2048}
    s_add_u32 s{sT}, s{sT}, {wsA}
    s_mul_i32 s{sT2}, s{sc}, {NU*5120}
    s_add_u32 s{sT2}, s{sT2}, {wsB}
    s_waitcnt lgkmcnt(0)
    s_add_u32 s{sA}, s{sO}, s{sT}
    s_addc_u32 s{sA+1}, s{sO+1}, 0
    s_add_u32 s{sB}, s{sO}, s{sT2}
    s_addc_u32 s{sB+1}, s{sO+1}, 0""")
    fin_srd(a, sA, NU * 2048); fin_srd(a, sB, NU * 5120); fin_srd(a, sO, WS_END); fin_srd(a, sX, T * D * 2)
    a(f"""s_mov_b32 s{sKA}, 0
    s_mul_i32 s{sKB}, s{sw}, 5120
    s_mov_b32 s{sDm}, 0""")
    sA0 = a.s(); sB0 = a.s()
    a(f"s_lshl_b32 s{sA0}, s{sw}, 12\ns_add_u32 s{sB0}, s{sKB}, 16384")
    def dma(i):
        if i < 4:
            return [f"s_add_u32 s{sT}, s{sDm}, s{sA0}\ns_add_u32 m0, s{sT}, {i*1024}\ns_add_u32 s{sKA2}, s{sKA}, {i*2048}",
                    f"buffer_load_dwordx4 v{vA}, {sr(sA,4)}, s{sKA2} offen lds"]
        p = i - 4
        if p < 4:
            return [f"s_add_u32 m0, s{sDm}, s{sB0}\ns_nop 0", f"buffer_load_dwordx4 v{vl16}, {sr(sB,4)}, s{sKB} offen offset:{p*1024} lds"]
        return [f"s_add_u32 s{sT}, s{sDm}, s{sB0}\ns_add_u32 m0, s{sT}, 4096\ns_add_u32 s{sKB2}, s{sKB}, 4096",
                f"buffer_load_dwordx4 v{vl16}, {sr(sB,4)}, s{sKB2} offen lds"]
    def dma_adv():
        return [f"s_add_u32 s{sKA}, s{sKA}, 8192", f"s_add_u32 s{sKB}, s{sKB}, 20480", f"s_add_u32 s{sDm}, s{sDm}, {SLOT}",
                f"s_cmp_eq_u32 s{sDm}, {4*SLOT}", f"s_cselect_b32 s{sDm}, 0, s{sDm}"]
    res = a.v(10)
    a(f"""v_bfe_u32 v{v1}, v0, 4, 1
    v_lshlrev_b32 v{v1}, 9, v{v1}
    v_lshl_add_u32 v{v1}, v{v2}, 8, v{v1}
    v_lshl_add_u32 v{v1}, v{v3}, 4, v{v1}
    v_bfe_u32 v{v2}, v0, 5, 1
    v_lshl_add_u32 v{vHs}, v{v2}, 3, v{v1}
    s_mul_i32 s{sH}, s{sH}, 40
    s_mul_i32 s{sT}, s{sc}, 5
    s_add_u32 s{sH}, s{sH}, s{sT}
    s_lshl_b32 s{sH}, s{sH}, 10
    s_add_u32 s{sH}, s{sH}, {WS_H}""")
    vR = [a.v() for _ in range(3)]
    sRow = a.s()
    a(f"""s_lshl_b32 s{sRow}, s{srb}, 2
    s_add_u32 s{sRow}, s{sRow}, s{sw}
    s_mul_i32 s{sRow}, s{sRow}, {16*1280}
    s_mul_i32 s{sT}, s{sc}, 160
    s_add_u32 s{sRow}, s{sRow}, s{sT}""")
    for k in range(3):
        a(f"""v_add_u32 v{v1}, {64*k}, v{vl}
        v_mul_u32_u24 v{v2}, 6554, v{v1}
        v_lshrrev_b32 v{v2}, 16, v{v2}
        v_mul_u32_u24 v{v2}, {1280-160}, v{v2}
        v_lshl_add_u32 v{vR[k]}, v{v1}, 4, v{v2}""")
    a(f"""v_cmp_gt_u32 vcc, 32, v{vl}
    v_mov_b32 v{v1}, 0x7f000000
    s_nop 0
    v_cndmask_b32 v{vR[2]}, v{v1}, v{vR[2]}, vcc""")
    sXT = a.s()
    a(f"s_mul_i32 s{sXT}, s{sw}, 3072\ns_add_u32 s{sXT}, s{sXT}, {XT}")
    if wo:
        for k in range(3):
            a(f"s_add_u32 m0, s{sXT}, {1024*k}\ns_nop 0\nbuffer_load_dwordx4 v{vR[k]}, {sr(sX,4)}, s{sRow} offen lds")
    else:
        for b in range(5):
            if b < 4: a(f"buffer_load_dwordx2 {vr(res+2*b,2)}, v{vHs}, {sr(sO,4)}, s{sH} offen offset:{1024*b}")
            else: a(f"s_add_u32 s{sT}, s{sH}, 4096\nbuffer_load_dwordx2 {vr(res+2*b,2)}, v{vHs}, {sr(sO,4)}, s{sT} offen")
    a(f"s_mov_b32 s{sCnt}, 3")
    a.label(f"{name}_pro")
    for i in (0, 4, 5, 1, 6, 2, 7, 3, 8):
        m, l = dma(i); a(m); a(l)
    a("\n".join(dma_adv()))
    a(f"s_sub_u32 s{sCnt}, s{sCnt}, 1\ns_cmp_lg_u32 s{sCnt}, 0\ns_cbranch_scc1 {name}_pro")
    bA = a.v(); bB = a.v(); rA = a.v(); rB = a.v()
    fA = [a.v(4) for _ in range(2)]
    fB = [[a.v(4) for _ in range(5)] for _ in range(2)]
    acc = [a.v(4) for _ in range(5)]
    a(f"""v_add_u32 v{bA}, s{sA0}, v{vl16}
    v_add_u32 v{bB}, 16384, v{vl16}
    v_mov_b32 v{rA}, v{bA}
    v_mov_b32 v{rB}, v{bB}
    s_mov_b32 s{sRd}, 0
    s_mov_b32 s{sCnt}, 0""")
    for r in [fA[1] + i for i in range(4)] + [x + i for x in fB[1] + acc for i in range(4)]: a(f"v_mov_b32 v{r}, 0")
    def reads(s, buf):
        return [f"ds_read_b128 {vr(fA[buf],4)}, v{rA} offset:{s*1024}"] + \
               [f"ds_read_b128 {vr(fB[buf][b],4)}, v{rB} offset:{s*5120+b*1024}" for b in range(5)]
    def step(buf, rd, dmas, extra=[]):
        rd = list(rd); dmas = list(dmas)
        if rd: a(rd.pop(0))
        for b in range(5):
            a(f"v_mfma_f32_16x16x32_bf16 {vr(acc[b],4)}, {vr(fB[buf][b],4)}, {vr(fA[buf],4)}, {vr(acc[b],4)}")
            if rd: a(rd.pop(0))
        for d in dmas:
            a(d[0]); a(d[1])
        for x in extra: a(x)
    a(".p2align 3")
    a.label(f"{name}_loop")
    a("s_waitcnt vmcnt(18) lgkmcnt(0)\ns_barrier")
    step(1, reads(0, 0), [dma(0), dma(4), dma(5)])
    a("s_waitcnt lgkmcnt(0)")
    step(0, reads(1, 1), [dma(1), dma(6)])
    if NU % 4:
        assert NU % 4 == 2
        a(f"s_cmp_eq_u32 s{sCnt}, {NCH-1}\ns_cbranch_scc1 {name}_tail")
    a("s_waitcnt lgkmcnt(0)")
    step(1, reads(2, 0), [dma(2), dma(7)], [f"s_add_u32 s{sRd}, s{sRd}, {SLOT}", f"s_cmp_eq_u32 s{sRd}, {4*SLOT}", f"s_cselect_b32 s{sRd}, 0, s{sRd}"])
    a("s_waitcnt lgkmcnt(0)")
    step(0, reads(3, 1), [dma(3), dma(8)], [f"v_add_u32 v{rA}, s{sRd}, v{bA}", f"v_add_u32 v{rB}, s{sRd}, v{bB}"] + dma_adv())
    a(f"s_add_u32 s{sCnt}, s{sCnt}, 1\ns_cmp_lt_u32 s{sCnt}, {NCH}\ns_cbranch_scc1 {name}_loop")
    a.label(f"{name}_tail")
    a("s_waitcnt lgkmcnt(0)")
    step(1, [], [])
    a(f"""v_mul_u32_u24 v{v1}, 160, v{v3}
    v_bfe_u32 v{v2}, v0, 4, 2
    v_lshl_add_u32 v{v1}, v{v2}, 3, v{v1}
    v_add_u32 v{v1}, s{sXT}, v{v1}
    s_mov_b32 s{sT2}, 0xffff0000""")
    if wo:
        for b in range(5): a(f"ds_read_b64 {vr(res+2*b,2)}, v{v1} offset:{32*b}")
        a("s_waitcnt lgkmcnt(0)")
    else:
        a("s_nop 3")
    t0 = fB[0][0]
    for b in range(5):
        a(f"""v_lshlrev_b32 v{t0}, 16, v{res+2*b}
        v_and_b32 v{t0+1}, s{sT2}, v{res+2*b}
        v_lshlrev_b32 v{t0+2}, 16, v{res+2*b+1}
        v_and_b32 v{t0+3}, s{sT2}, v{res+2*b+1}
        v_pk_add_f32 {vr(acc[b],2)}, {vr(acc[b],2)}, {vr(t0,2)}
        v_pk_add_f32 {vr(acc[b]+2,2)}, {vr(acc[b]+2,2)}, {vr(t0+2,2)}
        v_cvt_pk_bf16_f32 v{acc[b]}, v{acc[b]}, v{acc[b]+1}
        v_cvt_pk_bf16_f32 v{acc[b]+1}, v{acc[b]+2}, v{acc[b]+3}""")
        if wo:
            if b < 4: a(f"buffer_store_dwordx2 {vr(acc[b],2)}, v{vHs}, {sr(sO,4)}, s{sH} offen offset:{1024*b}")
            else: a(f"s_add_u32 s{sT}, s{sH}, 4096\nbuffer_store_dwordx2 {vr(acc[b],2)}, v{vHs}, {sr(sO,4)}, s{sT} offen")
        else:
            a(f"ds_write_b64 v{v1}, {vr(acc[b],2)} offset:{32*b}")
    if not wo:
        a(f"v_add_u32 v{v1}, s{sXT}, v{vl16}\ns_waitcnt lgkmcnt(0)")
        for k in range(3): a(f"ds_read_b128 {vr(fB[1][k],4)}, v{v1} offset:{1024*k}")
        for k in range(3):
            a(f"s_waitcnt lgkmcnt({2-k})\nbuffer_store_dwordx4 {vr(fB[1][k],4)}, v{vR[k]}, {sr(sX,4)}, s{sRow} offen")
    a.label(f"{name}_end")
    a("s_endpgm")
    return dict(name=name, grid=256, block=256, lds=XT + 4 * 3072, nv=a.maxv, ns=a.maxs)

def build(extra_empty=0):
    a = Asm()
    ks = []
    a('.amdgcn_target "amdgcn-amd-amdhsa--gfx950"\n.text')
    ks.append(gemm128(a, "k1_qkv_kernel", "qkv"))
    ks.append(attn(a, "k2_attn_kernel"))
    ks.append(gemm80(a, "k3_wo_kernel", "wo"))
    ks.append(gemm128(a, "k4_ffn1_kernel", "ffn1"))
    ks.append(gemm80(a, "k5_ffn2_kernel", "ffn2"))
    launches = list(ks)
    if extra_empty:
        kernel_begin(a, "k6_empty_kernel"); a("s_endpgm")
        e = dict(name="k6_empty_kernel", grid=256, block=256, lds=0, nv=8, ns=16)
        ks.append(e); launches += [e] * extra_empty
    body = a.text()
    bad = check_hazards(body)
    hdr = open("cdna_kernels/" + NAME + ".s.ref").read().split("\n")
    hdr = [l for l in hdr if l.startswith(";") and "@launch" not in l and "Override launch" not in l and "grid=ceil" not in l]
    out = "\n".join(hdr) + "\n"
    for k in launches:
        out += f"; @launch kernel={k['name']} grid=({k['grid']},1,1) block=({k['block']},1,1) lds={k['lds']}\n"
    out += body
    out += '.section .rodata,"a"\n'
    for k in ks: out += kernel_desc(k["name"], k["nv"], k["ns"])
    return out, ks, bad

if __name__ == "__main__":
    out, ks, bad = build(int(sys.argv[2]) if len(sys.argv) > 2 else 0)
    path = sys.argv[1] if len(sys.argv) > 1 else "cdna_kernels/" + NAME + ".s"
    open(path, "w").write(out)
    for k in ks: print(k)
    print("hazards:", len(bad), "WS_END", WS_END)
```

```python
import sys, math, os, struct
from asmlib import *

NAME = "sequential_preLN__softmax_full_mha__dense_activation_silu__prompt"
T, D, F, H, DH = 2048, 640, 1728, 32, 20
WS_Q = 0
WS_KV = WS_Q + H * 64 * 1280
WS_OM = WS_KV + H * 64 * 2560
WS_OT = WS_OM + 64 * 32 * 1024
WS_H = WS_OT + 64 * 32 * 256
WS_ST = WS_H + 128 * 20 * 1024
WS_H1 = WS_ST + 128 * 1024
WS_WO = WS_H1 + 128 * 54 * 1024
WS_W1 = WS_WO + 8 * 20 * 5 * 1024
WS_W2 = WS_W1 + 16 * 20 * 7 * 1024
WS_FL = WS_W2 + 8 * 54 * 5 * 1024
WS_END = WS_FL + 256 * 128
QSCALE = DH ** -0.5 * math.log2(math.e)
def fbits(x): return "0x%08x" % struct.unpack("<I", struct.pack("<f", x))[0]
DIAG = bool(os.environ.get("DIAG"))
WS_DIAG = 32 << 20
OPT = dict(kv.split("=") for kv in os.environ.get("OPT", "").split(",") if kv)
def opt(k, d): return type(d)(OPT.get(k, d))

def col0(cb): return 112 * cb if cb < 12 else 1344 + 96 * (cb - 12)
def repack_table():
    t = []
    for u in range(20):
        t.append((40*u, 20, 4, 8) if u < 16 else (160*(u-16) + 16, 80, 40, 20))
    for u in range(20):
        cp, r = divmod(u, 5)
        t.append((80*(2*cp + r//2) + 32*(r % 2), 8, 4, 16) if r < 4 else (160*cp + 64, 80, 4, 8))
    for u in range(54):
        if u < 42:
            cp, r = divmod(u, 7)
            t.append((col0(2*cp + r//3) + 32*(r % 3), 8, 4, 16) if r < 6 else (col0(2*cp) + 96, 112, 4, 8))
        else:
            cb, p = divmod(u - 42, 3)
            t.append((col0(12 + cb) + 32*p, 8, 4, 16))
    return t

L_CNT = 0
L_RING = 256; CH = 20480; L_CONST = L_RING + 2 * CH
L_STAT = 57344
L_W1 = 20480; L_WO = 61440; L_W2 = 10240; L_SCR = 256
LDS_BYTES = 163840

def build():
    a = Asm()
    name = NAME + "_kernel"
    a('.amdgcn_target "amdgcn-amd-amdhsa--gfx950"\n.text')
    a(f".globl {name}\n.p2align 8\n.type {name},@function")
    a.label(name)
    a.reset_regs(1, 4)
    nst = [0]
    def stamp(i):
        if DIAG: a(f"s_memrealtime s[{64+2*i}:{65+2*i}]")
    def flush():
        if not DIAG: return
        a("s_waitcnt vmcnt(0)"); stamp(13)
        a(f"""s_memtime s[96:97]
        s_waitcnt lgkmcnt(0)
        s_lshl_b32 s98, s2, 10
        s_add_u32 s98, s98, {WS_DIAG}
        s_add_u32 s94, s{sWS}, s98
        s_addc_u32 s95, s{sWS+1}, 0
        v_lshrrev_b32 v1, 6, v0
        v_lshlrev_b32 v1, 6, v1
        s_sub_u32 s96, s96, s92""")
        for i in range(14): a(f"v_mov_b32 v2, s{64+2*i}\nglobal_store_dword v1, v2, s[94:95] offset:{4*i}")
        a("v_mov_b32 v2, s96\nglobal_store_dword v1, v2, s[94:95] offset:60")
    sP = a.s(16); sWS = a.s(4); sR = a.s(4); sR2 = a.s(4)
    pX, pQKV, pWO, pW1, pW2, pOUT, pDBG = sP, sP+2, sP+4, sP+8, sP+10, sP+12, sP+14
    sw = a.s(); slw = a.s(); sT = a.s(); sT2 = a.s(); sT3 = a.s(); sCnt = a.s(); sRet = a.s(2)
    SB = a.ns
    vl = a.v(); vt = a.v(); vh = a.v(); vl16 = a.v(); v1 = a.v(); v2 = a.v(); v3 = a.v(); v4 = a.v()
    hp = a.v(10, 2)
    VB = a.nv
    def phase_regs():
        a.nv = VB; a.ns = SB
    def srd(r, p, n): a(f"s_mov_b32 s{r}, s{p}\ns_mov_b32 s{r+1}, s{p+1}\ns_mov_b32 s{r+2}, {n}\ns_mov_b32 s{r+3}, 0x20000")
    WSR = sr(sWS, 4)
    uid = [0]
    def L(x):
        uid[0] += 1; return f"L{x}_{uid[0]}"
    def poll(vaddr, phase):
        l = L("poll"); e = L("polle")
        a(f"s_mov_b32 s{sCnt}, 0")
        a.label(l)
        a(f"""buffer_load_dword v{v4}, v{vaddr}, {WSR}, 0 offen sc1
        s_add_u32 s{sCnt}, s{sCnt}, 1
        s_cmp_gt_u32 s{sCnt}, 0x200000
        s_cbranch_scc1 {e}
        s_waitcnt vmcnt(0)
        v_cmp_le_u32 vcc, {phase}, v{v4}
        s_cmp_eq_u64 vcc, -1
        s_cbranch_scc0 {l}""")
        a.label(e)
    def arrive(last, phase):
        n = L("arr")
        a(f"""v_mov_b32 v{v1}, {L_CNT}
        v_mov_b32 v{v2}, 1
        s_mov_b64 exec, 1
        s_waitcnt vmcnt(0)
        ds_add_rtn_u32 v{v3}, v{v1}, v{v2}
        s_lshl_b32 s{sT}, s2, 7
        s_add_u32 s{sT}, s{sT}, {WS_FL}
        v_mov_b32 v{v2}, {phase}
        s_waitcnt lgkmcnt(0)
        v_readfirstlane_b32 s{sT3}, v{v3}
        s_cmp_lg_u32 s{sT3}, {last}
        s_cbranch_scc1 {n}
        buffer_store_dword v{v2}, v{v1}, {WSR}, s{sT} offen sc1""")
        a.label(n)
        a("s_mov_b64 exec, -1")

    def reset_done():
        n = L("rst")
        a(f"""s_cmp_lg_u32 s{sw}, 0
        s_cbranch_scc1 {n}
        v_mov_b32 v{v1}, 0
        v_mov_b32 v{v2}, 1
        s_mov_b64 exec, 1
        s_waitcnt vmcnt(0)
        global_atomic_add v{v1}, v{v2}, {sr(pDBG,2)}
        s_mov_b64 exec, -1""")
        a.label(n)

    a(f"s_cmp_ge_u32 s2, 256\ns_cbranch_scc1 Lend")
    if DIAG:
        stamp(0); a("s_memtime s[92:93]")
        for i in range(1, 13): a(f"s_mov_b32 s{64+2*i}, 0")
    a(f"""s_load_dwordx16 {sr(sP,16)}, s[0:1], 0
    s_load_dwordx2 {sr(sWS,2)}, s[0:1], 64
    v_lshrrev_b32 v{v1}, 6, v0
    v_and_b32 v{vl}, 63, v0
    v_readfirstlane_b32 s{sw}, v{v1}
    v_and_b32 v{vt}, 31, v0
    v_bfe_u32 v{vh}, v0, 5, 1
    v_lshlrev_b32 v{vl16}, 4, v{vl}
    s_mov_b32 s{sWS+2}, {WS_END}
    s_mov_b32 s{sWS+3}, 0x20000
    s_and_b32 s{slw}, s{sw}, 3""")
    SLOT = 32768; NSL = 5; ldw = 3840
    srb = a.s(); scb = a.s()
    a(f"""s_and_b32 s{sT}, s2, 7
    s_lshr_b32 s{sT2}, s2, 3
    s_and_b32 s{scb}, s{sT}, 1
    s_mul_i32 s{scb}, s{scb}, 30
    s_add_u32 s{sT2}, s{sT2}, s{scb}
    s_lshr_b32 s{scb}, s{sT2}, 2
    s_and_b32 s{sT2}, s{sT2}, 3
    s_lshr_b32 s{srb}, s{sT}, 1
    s_lshl_b32 s{srb}, s{srb}, 2
    s_add_u32 s{srb}, s{srb}, s{sT2}
    s_cmp_lt_u32 s{sw}, 4
    s_cbranch_scc1 Lp1_first
    s_cmp_ge_u32 s2, 240
    s_cbranch_scc1 Lp1_idle""")
    P1V = a.nv; P1S = a.ns
    sKX = a.s(); sKW = a.s(); sDm = a.s(); sRd = a.s(); smask = a.s()
    vXd = [a.v() for _ in range(4)]; vWd = [a.v() for _ in range(4)]
    a(f"""s_lshl_b32 s{sT}, s{srb}, 2
    s_add_u32 s{sT}, s{sT}, s{slw}
    s_mul_i32 s{sT}, s{sT}, {32*1280}
    v_bfe_u32 v{v1}, v0, 2, 3
    v_mul_u32_u24 v{v1}, 1280, v{v1}
    v_lshl_add_u32 v{v1}, v{vh}, 6, v{v1}
    v_add_u32 v{v1}, s{sT}, v{v1}
    v_bfe_u32 v{v2}, v0, 4, 1
    v_and_b32 v{v3}, 3, v0
    v_xor_b32 v{v2}, v{v2}, v{v3}
    v_lshl_add_u32 v{vXd[0]}, v{v2}, 4, v{v1}
    v_xor_b32 v{vXd[1]}, 32, v{vXd[0]}
    v_add_u32 v{vXd[1]}, {8*1280}, v{vXd[1]}
    v_add_u32 v{vXd[2]}, {16*1280}, v{vXd[0]}
    v_add_u32 v{vXd[3]}, {16*1280}, v{vXd[1]}
    s_mul_i32 s{sT}, s{slw}, {16*ldw}
    s_lshl_b32 s{sT2}, s{scb}, 8
    s_add_u32 s{sT}, s{sT}, s{sT2}
    v_bfe_u32 v{v1}, v0, 2, 2
    v_mul_u32_u24 v{v1}, {ldw}, v{v1}
    v_bfe_u32 v{v2}, v0, 4, 2
    v_lshl_add_u32 v{v1}, v{v2}, 6, v{v1}
    v_lshl_add_u32 v{v1}, v{v3}, 4, v{v1}
    v_add_u32 v{vWd[0]}, s{sT}, v{v1}""")
    for p in range(1, 4): a(f"v_add_u32 v{vWd[p]}, {p*4*ldw}, v{vWd[0]}")
    a(f"""s_mov_b32 s{sKX}, 0
    s_mov_b32 s{sKW}, 0
    s_lshl_b32 s{sDm}, s{slw}, 12
    s_mov_b32 s{sCnt}, 0
    s_waitcnt lgkmcnt(0)""")
    srd(sR, pX, T*D*2); srd(sR2, pQKV, D*ldw)
    def p1_issue():
        for p in range(4):
            a(f"""s_add_u32 m0, s{sDm}, {p*1024}
            s_nop 0
            buffer_load_dwordx4 v{vXd[p]}, {sr(sR,4)}, s{sKX} offen lds
            s_add_u32 m0, s{sDm}, {16384+p*1024}
            s_nop 0
            buffer_load_dwordx4 v{vWd[p]}, {sr(sR2,4)}, s{sKW} offen lds""")
        a(f"""s_add_u32 s{sKX}, s{sKX}, 128
        s_add_u32 s{sKW}, s{sKW}, {64*ldw}
        s_add_u32 s{sDm}, s{sDm}, {SLOT}""")
    a.label("Lp1_pro")
    p1_issue()
    a(f"s_add_u32 s{sCnt}, s{sCnt}, 1\ns_cmp_lt_u32 s{sCnt}, {NSL}\ns_cbranch_scc1 Lp1_pro")
    stamp(1)
    a(f"s_lshl_b32 s{sDm}, s{slw}, 12")
    bX = [a.v(), a.v()]; bW = a.v(); rX = [a.v(), a.v()]; rW = a.v()
    def xread_base(dst0, dst1, stile12):
        a(f"""v_lshrrev_b32 v{v1}, 3, v{vt}
        v_lshlrev_b32 v{v1}, 10, v{v1}
        v_and_b32 v{v2}, 7, v{vt}
        v_lshl_add_u32 v{v1}, v{v2}, 6, v{v1}
        v_bfe_u32 v{v2}, v{vt}, 2, 2
        v_xor_b32 v{v2}, v{v2}, v{vh}
        v_lshl_add_u32 v{v1}, v{v2}, 4, v{v1}
        v_add_u32 v{dst0}, s{stile12}, v{v1}
        v_xor_b32 v{dst1}, 32, v{dst0}""")
    def wread_base(dst, snb8):
        a(f"""v_bfe_u32 v{v1}, v0, 2, 2
        v_lshlrev_b32 v{v1}, 6, v{v1}
        v_bfe_u32 v{v2}, v0, 4, 1
        v_lshl_add_u32 v{v1}, v{v2}, 5, v{v1}
        v_and_b32 v{v2}, 3, v0
        v_lshl_add_u32 v{v1}, v{v2}, 3, v{v1}
        v_lshl_add_u32 v{v1}, v{vh}, 11, v{v1}
        v_add_u32 v{dst}, s{snb8}, v{v1}""")
    xread_base(bX[0], bX[1], sDm)
    a(f"s_lshl_b32 s{sT}, s{slw}, 8\ns_add_u32 s{sT}, s{sT}, 16384")
    wread_base(bW, sT)
    gX = a.v(16); gW = a.v(16); sel = a.v(4); cs = a.v(4); st = [a.v() for _ in range(4)]; tl = [a.v() for _ in range(4)]
    a(f"""v_and_b32 v{v1}, 15, v0
    v_bfe_u32 v{v2}, v0, 4, 1
    v_cmp_eq_u32 vcc, v{v1}, v{v2}
    v_mov_b32 v{v3}, 0x3f803f80
    s_mov_b32 s{smask}, 0xffff0000""")
    for i in range(4): a(f"v_cndmask_b32 v{sel+i}, 0, v{v3}, vcc\nv_mov_b32 v{cs+i}, 0\nv_mov_b32 v{st[i]}, 0")
    a(f"s_mov_b32 s{sRd}, 0\ns_mov_b32 s{sCnt}, 0\ns_waitcnt vmcnt({8*(NSL-1)})")
    a.label("Lp1_lloop")
    a("s_barrier")
    a(f"v_add_u32 v{rX[0]}, s{sRd}, v{bX[0]}\nv_add_u32 v{rX[1]}, s{sRd}, v{bX[1]}\nv_add_u32 v{rW}, s{sRd}, v{bW}")
    for s in range(4): a(f"ds_read_b128 {vr(gX+4*s,4)}, v{rX[s&1]} offset:{(s>>1)*512}")
    for s in range(4):
        for e in range(2): a(f"ds_read_b64_tr_b16 {vr(gW+4*s+2*e,2)}, v{rW} offset:{s*4096+e*1024}")
    a(f"""s_sub_u32 s{sT}, s{sCnt}, 1
    s_cmp_ge_u32 s{sT}, {10-NSL}
    s_cbranch_scc1 Lp1_noissue""")
    p1_issue()
    a.label("Lp1_noissue")
    a(f"""s_add_u32 s{sRd}, s{sRd}, {SLOT}
    s_cmp_eq_u32 s{sRd}, {NSL*SLOT}
    s_cselect_b32 s{sRd}, 0, s{sRd}
    s_waitcnt lgkmcnt(0)""")
    for i in range(16):
        lo, hi = tl[2*(i&1)], tl[2*(i&1)+1]
        if i % 4 == 0: a(f"v_mfma_f32_16x16x32_bf16 {vr(cs,4)}, {vr(sel,4)}, {vr(gW+i,4)}, {vr(cs,4)}")
        a(f"""v_lshlrev_b32 v{lo}, 16, v{gX+i}
        v_and_b32 v{hi}, s{smask}, v{gX+i}
        v_add_f32 v{st[0]}, v{st[0]}, v{lo}
        v_add_f32 v{st[1]}, v{st[1]}, v{hi}
        v_fmac_f32 v{st[2]}, v{lo}, v{lo}
        v_fmac_f32 v{st[3]}, v{hi}, v{hi}""")
    a(f"s_add_u32 s{sCnt}, s{sCnt}, 1")
    for k in range(NSL-2, 0, -1):
        a(f"s_waitcnt vmcnt({8*k})\ns_cmp_le_u32 s{sCnt}, {9-k}\ns_cbranch_scc1 Lp1_lloop")
    a(f"s_waitcnt vmcnt(0)\ns_cmp_le_u32 s{sCnt}, 9\ns_cbranch_scc1 Lp1_lloop")
    a(f"""v_add_f32 v{st[0]}, v{st[0]}, v{st[1]}
    v_add_f32 v{st[2]}, v{st[2]}, v{st[3]}
    v_mov_b32 v{st[1]}, v{st[0]}
    v_mov_b32 v{st[3]}, v{st[2]}
    s_lshl_b32 s{sT}, s{slw}, 7
    s_add_u32 s{sT}, s{sT}, {L_STAT}
    v_permlane32_swap_b32 v{st[0]}, v{st[1]}
    v_permlane32_swap_b32 v{st[2]}, v{st[3]}
    v_add_f32 v{st[0]}, v{st[0]}, v{st[1]}
    v_add_f32 v{st[2]}, v{st[2]}, v{st[3]}
    v_mul_f32 v{st[0]}, {fbits(1.0/D)}, v{st[0]}
    v_mul_f32 v{st[2]}, {fbits(1.0/D)}, v{st[2]}
    v_fma_f32 v{st[2]}, -v{st[0]}, v{st[0]}, v{st[2]}
    v_max_f32 v{st[2]}, 0, v{st[2]}
    v_add_f32 v{st[2]}, {fbits(1e-5)}, v{st[2]}
    v_rsq_f32 v{st[2]}, v{st[2]}
    v_cmp_eq_u32 vcc, 0, v{vh}
    v_lshlrev_b32 v{v1}, 2, v{vt}
    v_lshl_add_u32 v{v1}, v{vh}, 9, v{v1}
    v_add_u32 v{v1}, s{sT}, v{v1}
    v_cndmask_b32 v{st[0]}, v{st[2]}, v{st[0]}, vcc
    ds_write_b32 v{v1}, v{st[0]}
    v_lshl_add_u32 v{v2}, v{vl}, 2, s{sT}
    v_mov_b32 v{v3}, 0
    s_mov_b64 exec, 0xffff
    ds_write_b32 v{v2}, v{cs} offset:1024
    ds_write_b32 v{v2}, v{cs+1} offset:1088
    ds_write_b32 v{v3}, v{v3} offset:{L_CNT}
    s_mov_b64 exec, -1
    s_waitcnt lgkmcnt(0)
    s_barrier""")
    a.label("Lp1_lpost")
    a("s_branch Lp2_setup")

    a.nv = P1V; a.ns = P1S
    sJ = a.s(); sDst = a.s(); sCo = a.s(4); ve = a.v(2); RPi = a.v(8)
    JS = dict(J=sJ, dst=sDst, co=sCo, ve=ve)
    a.label("Lp1_idle")
    a(f"""s_sub_u32 s{sJ}, s2, 240
    s_lshl_b32 s{sJ}, s{sJ}, 3
    s_add_u32 s{sJ}, s{sJ}, s{sw}
    s_waitcnt lgkmcnt(0)""")
    reset_done()
    a.label("Lp1_iloop")
    a(f"s_call_b64 {sr(sRet,2)}, Ljob")
    def job_loads(rp, srdq, ve_, co):
        for j in range(8): a(f"buffer_load_ushort v{rp+j}, v{ve_+(j>>2)}, {sr(srdq,4)}, s{co+(j&3)} offen")
    def job_store(rp, dst):
        for j in range(4): a(f"v_lshl_or_b32 v{rp+j}, v{rp+2*j+1}, 16, v{rp+2*j}")
        a(f"buffer_store_dwordx4 {vr(rp,4)}, v{vl16}, {WSR}, s{dst} offen sc1")
    job_loads(RPi, sR, ve, sCo)
    a("s_waitcnt vmcnt(0)")
    job_store(RPi, sDst)
    a(f"""s_add_u32 s{sJ}, s{sJ}, 128
    s_cmp_lt_u32 s{sJ}, 1024
    s_cbranch_scc1 Lp1_iloop
    v_mov_b32 v{v3}, 0
    ds_write_b32 v{v3}, v{v3} offset:{L_CNT}
    s_waitcnt vmcnt(0) lgkmcnt(0)
    s_barrier
    s_cmp_lt_u32 s{sw}, 4
    s_cbranch_scc1 Lp1_cdone
    s_branch Lp2_setup""")

    JT = a.ns
    su = a.s(); scbk = a.s(); sTb = a.s(4); sld = a.s(); sNU = a.s()
    a.label("Ljob")
    a(f"""s_cmp_ge_u32 s{sJ}, 800
    s_cselect_b32 s{sT}, 1, 0
    s_cmp_lt_u32 s{sJ}, 2960
    s_cselect_b32 s{sT}, s{sT}, 0
    s_cmp_eq_u32 s{sT}, 1
    s_cbranch_scc1 Ljob_w1
    s_cmp_ge_u32 s{sJ}, 800
    s_cselect_b32 s{sR}, s{pW2}, s{pWO}
    s_cselect_b32 s{sR+1}, s{pW2+1}, s{pWO+1}
    s_cselect_b32 s{sNU}, 54, 20
    s_cselect_b32 s{sT2}, 40, 0
    s_cselect_b32 s{sT}, 2960, 0
    s_cselect_b32 s{sDst}, {(WS_W2-WS_WO)//1024}, 0
    s_mul_i32 s{sR+2}, s{sNU}, {32*1280}
    s_sub_u32 s{sT}, s{sJ}, s{sT}
    s_mul_i32 s{su}, s{sT}, 52429
    s_lshr_b32 s{su}, s{su}, 21
    s_mul_i32 s{sT3}, s{su}, 40
    s_sub_u32 s{scbk}, s{sT}, s{sT3}
    s_mul_i32 s{sT}, s{scbk}, 13108
    s_lshr_b32 s{sT}, s{sT}, 16
    s_sub_u32 s{sT3}, s{sNU}, 1
    s_mul_i32 s{sT}, s{sT}, s{sT3}
    s_add_u32 s{sT}, s{sT}, s{su}
    s_mul_i32 s{sT}, s{sT}, 5
    s_add_u32 s{sT}, s{sT}, s{scbk}
    s_add_u32 s{sDst}, s{sDst}, s{sT}
    s_movk_i32 s{sld}, 1280
    s_branch Ljob_c""")
    a.label("Ljob_w1")
    a(f"""s_mov_b32 s{sR}, s{pW1}
    s_mov_b32 s{sR+1}, s{pW1+1}
    s_mov_b32 s{sR+2}, {D*F*2}
    s_sub_u32 s{sT}, s{sJ}, 800
    s_mul_i32 s{su}, s{sT}, 38837
    s_lshr_b32 s{su}, s{su}, 22
    s_mul_i32 s{sT3}, s{su}, 108
    s_sub_u32 s{scbk}, s{sT}, s{sT3}
    s_sub_u32 s{sT}, s{scbk}, 84
    s_mul_i32 s{sT}, s{sT}, 10923
    s_lshr_b32 s{sT}, s{sT}, 16
    s_cmp_ge_u32 s{scbk}, 84
    s_cselect_b32 s{sT}, s{sT}, 0
    s_add_u32 s{sT3}, s{scbk}, s{sT}
    s_mul_i32 s{sT}, s{sT3}, 9363
    s_lshr_b32 s{sT}, s{sT}, 16
    s_mul_i32 s{sT}, s{sT}, 19
    s_add_u32 s{sT}, s{sT}, s{su}
    s_mul_i32 s{sT}, s{sT}, 7
    s_add_u32 s{sT}, s{sT}, s{sT3}
    s_add_u32 s{sDst}, s{sT}, {(WS_W1-WS_WO)//1024}
    s_movk_i32 s{sld}, 3456
    s_mov_b32 s{sT2}, 20""")
    a.label("Ljob_c")
    a(f"""s_add_u32 s{su}, s{su}, s{sT2}
    s_lshl_b32 s{su}, s{su}, 4
    s_getpc_b64 {sr(sTb,2)}""")
    a.label("Ljob_pc")
    a(f"""s_add_u32 s{sTb}, s{sTb}, Ltable-Ljob_pc
    s_addc_u32 s{sTb+1}, s{sTb+1}, 0
    s_load_dwordx4 {sr(sTb,4)}, {sr(sTb,2)}, s{su}
    s_mov_b32 s{sR+3}, 0x20000
    s_lshl_b32 s{sDst}, s{sDst}, 10
    s_add_u32 s{sDst}, s{sDst}, {WS_WO}
    s_lshl_b32 s{sCo}, s{scbk}, 5
    s_add_u32 s{sCo+1}, s{sCo}, s{sld}
    s_add_u32 s{sCo+2}, s{sCo+1}, s{sld}
    s_add_u32 s{sCo+3}, s{sCo+2}, s{sld}
    v_bfe_u32 v{v2}, v0, 4, 1
    v_and_b32 v{v3}, 15, v0
    s_waitcnt lgkmcnt(0)
    v_mul_u32_u24 v{v1}, s{sTb+1}, v{vh}
    v_mul_u32_u24 v{v2}, s{sTb+2}, v{v2}
    v_add3_u32 v{v1}, v{v1}, v{v2}, s{sTb}
    v_lshl_add_u32 v{ve}, v{v3}, 1, v{v1}
    v_add_u32 v{ve+1}, s{sTb+3}, v{ve}
    s_setpc_b64 {sr(sRet,2)}""")
    JOBV = a.nv; JOBS = a.ns

    a.nv = P1V; a.ns = P1S
    a.label("Lp1_first")
    a(f"""s_waitcnt lgkmcnt(0)
    s_cmp_lg_u32 s{sw}, 0
    s_cbranch_scc1 Lp1_noreset
    s_lshl_b32 s{sT}, s2, 7
    s_add_u32 s{sT}, s{sT}, {WS_FL}
    v_mov_b32 v{hp}, 0
    s_mov_b64 exec, 1
    buffer_store_dword v{hp}, v{hp}, {WSR}, s{sT} offen sc1
    s_mov_b64 exec, -1""")
    a.label("Lp1_noreset")
    if opt("codepf", 1):
        a(f"""s_cmp_lg_u32 s{sw}, 1
        s_cbranch_scc1 Lp1_nopf
        s_getpc_b64 {sr(sRet,2)}""")
        a.label("Lpf_pc")
        a(f"""v_lshlrev_b32 v{v1}, 7, v{vl}
        s_mov_b32 s{sCnt}, 0""")
        a.label("Lpf_loop")
        a(f"""v_min_u32 v{v2}, Lcode_end-Lpf_pc-4, v{v1}
        global_load_dword v{hp}, v{v2}, {sr(sRet,2)}
        v_add_u32 v{v1}, 8192, v{v1}
        s_add_u32 s{sCnt}, s{sCnt}, 8192
        s_cmp_lt_u32 s{sCnt}, Lcode_end-Lpf_pc
        s_cbranch_scc1 Lpf_loop""")
        a.label("Lp1_nopf")
    a(f"s_cmp_ge_u32 s2, 240\ns_cbranch_scc1 Lp1_idle")
    swm = a.s(); swn = a.s(); sRd = a.s(); isK = a.s(); shs = a.s(); sOff = a.s(); sr5 = a.s(); sTok = [a.s() for _ in range(4)]
    bX = [a.v(), a.v()]; bW = a.v(); rX = [a.v(), a.v()]; rW = a.v(); vA = [a.v(), a.v()]
    fX = [[a.v(4) for _ in range(2)] for _ in range(2)]; fW = [[a.v(4) for _ in range(2)] for _ in range(2)]
    acc = [[a.v(16) for _ in range(2)] for _ in range(2)]
    big = a.v(64); pm = a.v(2); pr = a.v(2)
    a(f"""s_setprio 2
    s_lshr_b32 s{swm}, s{sw}, 1
    s_and_b32 s{swn}, s{sw}, 1
    s_lshl_b32 s{sT}, s{swm}, 13""")
    xread_base(bX[0], bX[1], sT)
    a(f"s_lshl_b32 s{sT}, s{swn}, 9\ns_add_u32 s{sT}, s{sT}, 16384")
    wread_base(bW, sT)
    for r, b in zip(rX + [rW], bX + [bW]): a(f"v_mov_b32 v{r}, v{b}")
    for r in [x + i for x in fX[1] + fW[1] for i in range(4)] + [x + i for row in acc for x in row for i in range(16)]:
        a(f"v_mov_b32 v{r}, 0")
    reset_done()
    a(f"""s_mov_b32 s{sRd}, 0
    s_mov_b32 s{sCnt}, 0
    s_lshl_b32 s{sT}, s{srb}, 2
    s_lshl_b32 s{sT2}, s{swm}, 1
    s_add_u32 s{sT3}, s{sT}, s{sT2}
    s_cmp_ge_u32 s{scb}, 10
    s_cbranch_scc1 Lp1_V""")
    a(f"""s_cmp_ge_u32 s{scb}, 5
    s_cselect_b32 s{isK}, 1, 0
    s_cselect_b32 s{sT}, 5, 0
    s_sub_u32 s{sT}, s{scb}, s{sT}
    s_lshl_b32 s{sT}, s{sT}, 1
    s_add_u32 s{sT}, s{sT}, s{swn}
    s_lshl_b32 s{sT}, s{sT}, 3
    s_mul_i32 s{sT2}, s{sT}, 13108
    s_lshr_b32 s{sT2}, s{sT2}, 16
    s_mul_i32 s{sr5}, s{sT2}, 5
    s_sub_u32 s{sr5}, s{sT}, s{sr5}
    s_lshl_b32 s{shs}, {64*1280}, s{isK}
    s_mul_i32 s{sOff}, s{sT2}, s{shs}
    s_lshl_b32 s{sOff}, s{sOff}, 1
    s_lshl_b32 s{sT}, s{sr5}, 9
    s_add_u32 s{sOff}, s{sOff}, s{sT}
    s_sub_u32 s{sT}, s{shs}, 1536
    s_cmp_ge_u32 s{sr5}, 3
    s_cselect_b32 s{sT}, s{sT}, 0
    s_add_u32 s{sOff}, s{sOff}, s{sT}
    s_mul_i32 s{sT}, s{isK}, {WS_KV-WS_Q}
    s_add_u32 s{sOff}, s{sOff}, s{sT}
    s_add_u32 s{sOff}, s{sOff}, {WS_Q}
    s_sub_u32 s{sT3}, s{sT3}, s{isK}
    v_add_u32 v{v3}, s{sT3}, v{vh}
    v_and_b32 v{v3}, 63, v{v3}
    s_lshl_b32 s{sT}, 1280, s{isK}
    v_mul_u32_u24 v{v3}, s{sT}, v{v3}
    s_mul_i32 s{sT2}, s{isK}, 12
    v_lshrrev_b32 v{v1}, 1, v{vt}
    v_xor_b32 v{v1}, v{v1}, v{vt}
    v_bfe_u32 v{v1}, v{v1}, 2, 1
    v_mul_u32_u24 v{v1}, s{sT2}, v{v1}
    v_xor_b32 v{v1}, v{v1}, v{vt}
    v_lshl_add_u32 v{vA[0]}, v{v1}, 4, v{v3}
    v_lshl_add_u32 v{vA[1]}, v{v1}, 3, v{v3}""")
    def reads(s, buf):
        xr = lambda xi: f"ds_read_b128 {vr(fX[buf][xi],4)}, v{rX[s&1]} offset:{(s>>1)*512+xi*4096}"
        wr = lambda wi, e: f"ds_read_b64_tr_b16 {vr(fW[buf][wi]+2*e,2)}, v{rW} offset:{s*4096+e*1024+wi*256}"
        return [xr(0), wr(0,0), wr(0,1), wr(1,0), wr(1,1), xr(1)]
    def step(buf, vo, rd, extra=[]):
        for j, (xi, wi) in enumerate([(0,0), (0,1), (1,0), (1,1)]):
            A, B = (fX[buf][xi], fW[buf][wi]) if vo else (fW[buf][wi], fX[buf][xi])
            a(f"v_mfma_f32_32x32x16_bf16 {vr(acc[xi][wi],16)}, {vr(A,4)}, {vr(B,4)}, {vr(acc[xi][wi],16)}")
            for x in rd[2*j:2*j+2]: a(x)
        for x in extra: a(x)
    def p1_main(tag, vo):
        stamp(2)
        a(".p2align 3")
        a.label(f"Lp1_loop{tag}")
        a("s_waitcnt lgkmcnt(0)\ns_barrier")
        step(1, vo, reads(0, 0))
        a("s_waitcnt lgkmcnt(0)")
        step(0, vo, reads(1, 1), [f"s_add_u32 s{sRd}, s{sRd}, {SLOT}", f"s_cmp_eq_u32 s{sRd}, {NSL*SLOT}", f"s_cselect_b32 s{sRd}, 0, s{sRd}"])
        a("s_waitcnt lgkmcnt(0)")
        step(1, vo, reads(2, 0), [f"s_add_u32 s{sCnt}, s{sCnt}, 1", f"s_cmp_lt_u32 s{sCnt}, 10"])
        a("s_waitcnt lgkmcnt(0)")
        step(0, vo, reads(3, 1), [f"v_add_u32 v{r}, s{sRd}, v{b}" for r, b in zip(rX + [rW], bX + [bW])])
        a(f"s_cbranch_scc1 Lp1_loop{tag}")
        a("s_waitcnt lgkmcnt(0)")
        step(1, vo, [])
        a(f"v_lshlrev_b32 v{v1}, 4, v{vh}\nv_lshlrev_b32 v{v2}, 2, v{vt}")
        a(f"""s_lshl_b32 s{sT}, s{swm}, 8
        s_add_u32 s{sT}, s{sT}, {L_STAT}
        s_lshl_b32 s{sT2}, s{swn}, 8
        s_add_u32 s{sT2}, s{sT2}, {L_STAT+1024}
        s_barrier""")
        stamp(3)
    p1_main("T", False)
    a(f"v_add_u32 v{v3}, s{sT2}, v{v1}\nv_add_u32 v{v4}, s{sT}, v{v2}")
    for xi in range(2): a(f"ds_read_b32 v{pm+xi}, v{v4} offset:{128*xi}\nds_read_b32 v{pr+xi}, v{v4} offset:{512+128*xi}")
    for wi in range(2):
        for g in range(4): a(f"ds_read_b128 {vr(big+16*wi+4*g,4)}, v{v3} offset:{128*wi+32*g}")
    a(f"""s_cmp_eq_u32 s{isK}, 1
    s_cselect_b32 s{sT}, 1.0, {fbits(QSCALE)}
    s_waitcnt lgkmcnt(8)
    v_mul_f32 v{pr}, s{sT}, v{pr}
    v_mul_f32 v{pr+1}, s{sT}, v{pr+1}""")
    for wi in range(2):
        for g in range(4):
            k = wi*4 + g
            a(f"s_waitcnt lgkmcnt({7-k})")
            o = big + 32 + 4*k
            for xi in range(2):
                A = acc[xi][wi] + 4*g
                for i in (0, 2):
                    a(f"v_pk_fma_f32 {vr(A+i,2)}, {vr(pm,2)}, {vr(big+4*k+i,2)}, {vr(A+i,2)} op_sel:[{xi},0,0] op_sel_hi:[{xi},1,1] neg_lo:[1,0,0] neg_hi:[1,0,0]")
                for i in (0, 2):
                    a(f"v_pk_mul_f32 {vr(A+i,2)}, {vr(pr,2)}, {vr(A+i,2)} op_sel:[{xi},0] op_sel_hi:[{xi},1]")
                a(f"v_cvt_pk_bf16_f32 v{o+2*xi}, v{A}, v{A+1}\nv_cvt_pk_bf16_f32 v{o+2*xi+1}, v{A+2}, v{A+3}")
            lt, ln = L("t"), L("n")
            a(f"""s_sub_u32 s{sT2}, s{shs}, 512
            s_cmp_eq_u32 s{sr5}, 2
            v_permlane32_swap_b32 v{o}, v{o+2}
            v_permlane32_swap_b32 v{o+1}, v{o+3}
            s_cbranch_scc1 {lt}
            buffer_store_dwordx4 {vr(o,4)}, v{vA[0]}, {WSR}, s{sOff} offen sc1
            s_cmp_eq_u32 s{sr5}, 4
            s_cselect_b32 s{sT2}, s{sT2}, 0x200
            s_cselect_b32 s{sr5}, -1, s{sr5}
            s_add_u32 s{sOff}, s{sOff}, s{sT2}
            s_branch {ln}""")
            a.label(lt)
            a(f"""s_add_u32 s{sT2}, s{sOff}, s{shs}
            buffer_store_dwordx2 {vr(o,2)}, v{vA[1]}, {WSR}, s{sOff} offen sc1
            buffer_store_dwordx2 {vr(o+2,2)}, v{vA[1]}, {WSR}, s{sT2} offen sc1
            s_sub_u32 s{sOff}, s{sT2}, 1024""")
            a.label(ln)
            a(f"s_add_u32 s{sr5}, s{sr5}, 1")
    a("s_branch Lp1_cdone")
    a.label("Lp1_V")
    for wi in range(2):
        a(f"""s_sub_u32 s{sT}, s{scb}, 10
        s_lshl_b32 s{sT}, s{sT}, 1
        s_add_u32 s{sT}, s{sT}, s{swn}
        s_lshl_b32 s{sT}, s{sT}, 6
        s_add_u32 s{sT}, s{sT}, {32*wi}
        v_add_u32 v{v1}, s{sT}, v{vt}
        v_mul_u32_u24 v{v2}, 3277, v{v1}
        v_lshrrev_b32 v{v2}, 16, v{v2}
        v_mul_u32_u24 v{v2}, {64*2560-320}, v{v2}
        v_lshl_add_u32 v{v2}, v{v1}, 4, v{v2}
        v_mul_u32_u24 v{v3}, 320, v{vh}
        v_add_u32 v{vA[wi]}, v{v2}, v{v3}""")
    for xi in range(2):
        a(f"""s_add_u32 s{sT}, s{sT3}, {xi}
        s_mul_i32 s{sT2}, s{sT}, 2560
        s_add_u32 s{sTok[2+xi]}, s{sT2}, {WS_KV+1920}
        s_sub_u32 s{sT}, s{sT}, 1
        s_and_b32 s{sT}, s{sT}, 63
        s_mul_i32 s{sT}, s{sT}, 2560
        s_add_u32 s{sTok[xi]}, s{sT}, {WS_KV+1280}""")
    p1_main("V", True)
    a(f"v_add_u32 v{v3}, s{sT}, v{v1}\nv_add_u32 v{v4}, s{sT2}, v{v2}")
    for wi in range(2): a(f"ds_read_b32 v{pm+wi}, v{v4} offset:{128*wi}")
    for xi in range(2):
        for g in range(4):
            a(f"ds_read_b128 {vr(big+32*xi+4*g,4)}, v{v3} offset:{128*xi+32*g}")
            a(f"ds_read_b128 {vr(big+32*xi+16+4*g,4)}, v{v3} offset:{512+128*xi+32*g}")
        if xi == 0: a("s_waitcnt lgkmcnt(4)")
    for xi in range(2):
        a(f"s_waitcnt lgkmcnt({8 if xi == 0 else 0})")
        for wi in range(2):
            A = acc[xi][wi]
            for j in range(2):
                for i in range(8*j, 8*j+8, 2):
                    a(f"v_pk_fma_f32 {vr(A+i,2)}, {vr(pm,2)}, {vr(big+32*xi+i,2)}, {vr(A+i,2)} op_sel:[{wi},0,0] op_sel_hi:[{wi},1,1] neg_lo:[1,0,0] neg_hi:[1,0,0]")
                for i in range(8*j, 8*j+8, 2):
                    a(f"v_pk_mul_f32 {vr(A+i,2)}, {vr(big+32*xi+16+i,2)}, {vr(A+i,2)}")
                for i in range(4): a(f"v_cvt_pk_bf16_f32 v{A+8*j+i}, v{A+8*j+2*i}, v{A+8*j+2*i+1}")
                a(f"buffer_store_dwordx4 {vr(A+8*j,4)}, v{vA[wi]}, {WSR}, s{sTok[2*j+xi]} offen sc1")
    a.label("Lp1_cdone")
    stamp(4)
    arrive(3, 1)
    a("s_setprio 0")

    a.label("Lp2_setup")
    a.nv = JOBV; a.ns = JT
    shead = a.s(); sqt = a.s(); sKV = a.s(); sG = a.s(); sDm = a.s(); sDx = a.s(); skh = a.s(); sWp = a.s()
    sm64 = a.s(2); sm2 = a.s(2)
    assert a.ns >= JOBS
    sCo2 = a.s(4); sDst2 = srb
    ve2 = a.v(2); RP2 = a.v(8)
    vidx = a.v(); vones = a.v(); vpad = a.v()
    aK16 = a.v(); aK4 = a.v(); aV = a.v(); xK16 = a.v(); xK4 = a.v(); xV = a.v(); gK4 = a.v(); gV = a.v()
    Q16 = [a.v(4), a.v(4)]; Q4 = [a.v(2), a.v(2)]; K4 = a.v(2); K16 = a.v(4); V0 = a.v(4); V1 = a.v(4)
    S = [a.v(16) for _ in range(4)]; O = [a.v(16), a.v(16)]
    a(f"""s_lshl_b32 s{sJ}, s2, 3
    s_add_u32 s{sJ}, s{sJ}, s{sw}
    s_add_u32 s{sJ}, s{sJ}, 1024
    s_call_b64 {sr(sRet,2)}, Ljob
    s_mov_b32 s{sR2}, s{sR}
    s_mov_b32 s{sR2+1}, s{sR+1}
    s_mov_b32 s{sR2+2}, s{sR+2}
    s_mov_b32 s{sR2+3}, 0x20000
    s_mov_b32 s{sDst2}, s{sDst}
    s_mov_b64 {sr(sCo2,2)}, {sr(sCo,2)}
    s_mov_b64 {sr(sCo2+2,2)}, {sr(sCo+2,2)}
    v_mov_b32 v{ve2}, v{ve}
    v_mov_b32 v{ve2+1}, v{ve+1}
    s_add_u32 s{sJ}, s{sJ}, 2048
    s_call_b64 {sr(sRet,2)}, Ljob""")
    a(f"""s_and_b32 s{shead}, s2, 7
    s_lshl_b32 s{shead}, s{shead}, 2
    s_lshr_b32 s{sT}, s2, 6
    s_add_u32 s{shead}, s{shead}, s{sT}
    s_lshr_b32 s{skh}, s{sw}, 2
    s_bfe_u32 s{sqt}, s2, 0x30003
    s_lshl_b32 s{sqt}, s{sqt}, 2
    s_add_u32 s{sqt}, s{sqt}, s{slw}
    s_lshl_b32 s{sqt}, s{sqt}, 1
    s_add_u32 s{sqt}, s{sqt}, s{skh}
    s_mul_i32 s{sKV}, s{shead}, {64*2560}
    s_add_u32 s{sKV}, s{sKV}, {WS_KV}
    s_lshl_b32 s{sT}, s{slw}, 10
    s_mul_i32 s{sG}, s{skh}, {32*2560}
    s_add_u32 s{sG}, s{sG}, s{sKV}
    s_add_u32 s{sG}, s{sG}, s{sT}
    s_mul_i32 s{sT2}, s{skh}, 10240
    s_add_u32 s{sT2}, s{sT2}, {L_RING}
    s_add_u32 s{sDm}, s{sT2}, s{sT}
    s_add_u32 s{sDx}, s{sDm}, {CH}
    s_xor_b32 s{sDx}, s{sDx}, s{sDm}
    s_lshl_b32 s{sWp}, s{sw}, 11
    v_lshlrev_b32 v{gK4}, 3, v{vt}
    v_mul_u32_u24 v{gV}, 320, v{vh}
    v_lshl_add_u32 v{gV}, v{vt}, 4, v{gV}
    v_mov_b32 v{vones}, 0x3f803f80
    v_mov_b32 v{vidx}, 0xdddd
    v_cmp_eq_u32 {sr(sm64,2)}, 0, v{vh}
    v_cmp_gt_u32 {sr(sm2,2)}, 20, v{vt}
    v_cmp_eq_u32 vcc, 20, v{vt}
    v_add_u32 v{aK16}, s{sT2}, v{vl16}
    v_add_u32 v{aK4}, s{sT2}, v{gK4}
    v_add_u32 v{aV}, s{sT2}, v{gV}
    v_cndmask_b32 v{vpad}, 0, v{vones}, vcc""")
    for x, ad in ((xK16, aK16), (xK4, aK4), (xV, aV)):
        a(f"v_add_u32 v{x}, {CH}, v{ad}\nv_xor_b32 v{x}, v{x}, v{ad}")
    a(f"""v_mov_b32 v{v1}, {L_CONST+256}
    v_add_u32 v{v2}, {L_CONST}, v{gV}
    v_cndmask_b32 v{aK4}, v{v1}, v{aK4}, {sr(sm64,2)}
    v_cndmask_b32 v{xK4}, 0, v{xK4}, {sr(sm64,2)}
    v_cndmask_b32 v{aV}, v{v2}, v{aV}, {sr(sm2,2)}
    v_cndmask_b32 v{xV}, 0, v{xV}, {sr(sm2,2)}""")
    for k in range(2):
        a(f"""v_add_u32 v{v1}, {512*k}, v0
        v_mul_u32_u24 v{v2}, 3277, v{v1}
        v_lshrrev_b32 v{v2}, 16, v{v2}
        v_mul_u32_u24 v{v2}, 20, v{v2}
        v_cmp_eq_u32 vcc, v{v1}, v{v2}
        v_min_u32 v{v1}, 703, v{v1}
        v_lshlrev_b32 v{v1}, 4, v{v1}""")
        for i in range(4): a(f"v_cndmask_b32 v{V1+i}, 0, v{vones}, vcc")
        a(f"ds_write_b128 v{v1}, {vr(V1,4)} offset:{L_CONST}")
    for i in range(32): a(f"v_mov_b32 v{O[0]+i}, 0")
    for i in range(8): a(f"v_mov_b32 v{S[3]+8+i}, 0")
    a(f"s_cmp_lt_u32 s{sw}, 4\ns_cbranch_scc1 Ls1_done\nv_mov_b32 v{v1}, 0\ns_mov_b32 s{sCnt}, 0")
    a.label("Ls1_rst")
    a(f"""global_load_dword v{v4}, v{v1}, {sr(pDBG,2)} sc1
    s_add_u32 s{sCnt}, s{sCnt}, 1
    s_cmp_gt_u32 s{sCnt}, 0x200000
    s_cbranch_scc1 Ls1_done
    s_waitcnt vmcnt(0)
    v_readfirstlane_b32 s{sT}, v{v4}
    s_cmp_lt_u32 s{sT}, 256
    s_cbranch_scc1 Ls1_rst
    s_lshl_b32 s{sT}, s{slw}, 13
    s_add_u32 s{sT}, s{sT}, {WS_FL}
    v_lshl_add_u32 v{v1}, v{vl}, 7, s{sT}""")
    poll(v1, 1)
    a.label("Ls1_done")
    a("s_waitcnt lgkmcnt(0)\ns_barrier")
    stamp(5)
    Kz = S[2]
    a(f"""s_lshl_b32 s{sT}, s{shead}, 6
    s_add_u32 s{sT}, s{sT}, s{sqt}
    s_xor_b32 s{sT2}, s{sT}, 1
    s_mul_i32 s{sT}, s{sT}, 1280
    s_mul_i32 s{sT2}, s{sT2}, 1280
    s_add_u32 s{sT3}, s{sKV}, {63*2560}
    buffer_load_dwordx4 {vr(Kz,4)}, v{vl16}, {WSR}, s{sT3} offen sc1
    buffer_load_dwordx2 {vr(Kz+4,2)}, v{gK4}, {WSR}, s{sT3} offen offset:1024 sc1
    buffer_load_dwordx4 {vr(Q16[0],4)}, v{vl16}, {WSR}, s{sT} offen sc1
    buffer_load_dwordx2 {vr(Q4[0],2)}, v{gK4}, {WSR}, s{sT} offen offset:1024 sc1
    buffer_load_dwordx4 {vr(Q16[1],4)}, v{vl16}, {WSR}, s{sT2} offen sc1
    buffer_load_dwordx2 {vr(Q4[1],2)}, v{gK4}, {WSR}, s{sT2} offen offset:1024 sc1
    s_mul_i32 s{sT}, s{skh}, {32*2560}
    s_sub_u32 s{sT3}, s{sT3}, s{sT}
    buffer_load_dwordx4 {vr(K16,4)}, v{vl16}, {WSR}, s{sT3} offen sc1
    buffer_load_dwordx2 {vr(K4,2)}, v{gK4}, {WSR}, s{sT3} offen offset:1024 sc1
    buffer_load_dwordx4 {vr(V0,4)}, v{gV}, {WSR}, s{sT3} offen offset:1280 sc1""")
    assert WS_Q == 0
    def kv_chunk(tag):
        a(f"""s_mov_b32 m0, s{sDm}
        s_add_u32 s{sT}, s{sG}, 4096
        buffer_load_dwordx4 v{vl16}, {WSR}, s{sG} offen sc1 lds
        s_add_u32 m0, s{sDm}, 4096
        s_cmp_ge_u32 s{slw}, 2
        buffer_load_dwordx4 v{vl16}, {WSR}, s{sT} offen sc1 lds
        s_cbranch_scc1 Lkv_{tag}
        s_add_u32 m0, s{sDm}, 8192
        s_add_u32 s{sT}, s{sG}, 8192
        buffer_load_dwordx4 v{vl16}, {WSR}, s{sT} offen sc1 lds""")
        a.label(f"Lkv_{tag}")
        a(f"s_add_u32 s{sG}, s{sG}, 10240\ns_xor_b32 s{sDm}, s{sDm}, s{sDx}")
    kv_chunk("p")
    job_loads(RP2, sR2, ve2, sCo2); job_loads(RPi, sR, ve, sCo)
    a("s_waitcnt vmcnt(21)")
    for q in range(2):
        a(f"v_cndmask_b32 v{Q4[q]}, 0, v{Q4[q]}, {sr(sm64,2)}\nv_cndmask_b32 v{Q4[q]+1}, 0, v{Q4[q]+1}, {sr(sm64,2)}")
    a("s_nop 0")
    for q in range(2):
        a(f"""v_mfma_f32_32x32x8_bf16 {vr(S[q],16)}, {vr(Kz+4,2)}, {vr(Q4[q],2)}, 0
        v_mfma_f32_32x32x16_bf16 {vr(S[q],16)}, {vr(Kz,4)}, {vr(Q16[q],4)}, {vr(S[q],16)}""")
    a("s_waitcnt vmcnt(16)")
    a(f"v_cndmask_b32 v{K4}, v{vones}, v{K4}, {sr(sm64,2)}\nv_cndmask_b32 v{K4+1}, v{vones}, v{K4+1}, {sr(sm64,2)}")
    for i in range(4): a(f"v_cndmask_b32 v{V0+i}, v{vpad}, v{V0+i}, {sr(sm2,2)}")
    a("s_nop 2")
    def rowmax(dst, s, tmp):
        a(f"v_max3_f32 v{dst}, v{s}, v{s+1}, v{s+2}")
        for i in range(3, 15, 2): a(f"v_max3_f32 v{dst}, v{dst}, v{s+i}, v{s+i+1}")
        a(f"""v_max_f32 v{dst}, v{dst}, v{s+15}
        v_mov_b32 v{tmp}, v{dst}
        s_nop 1
        v_permlane32_swap_b32 v{dst}, v{tmp}
        v_max_f32 v{dst}, v{dst}, v{tmp}""")
    def m8(s, q): a(f"v_mfma_f32_32x32x8_bf16 {vr(s,16)}, {vr(K4,2)}, {vr(Q4[q],2)}, 0")
    def m16(s, q): a(f"v_mfma_f32_32x32x16_bf16 {vr(s,16)}, {vr(K16,4)}, {vr(Q16[q],4)}, {vr(s,16)}")
    def ex(s, x, y):
        for i in range(x, y): a(f"v_exp_f32 v{s+i}, v{s+i}")
    def sm(o, v, s): a(f"v_smfmac_f32_32x32x32_bf16 {vr(o,16)}, {vr(v,4)}, {vr(s,8)}, v{vidx}")
    for q in range(2):
        rowmax(v1, S[q], v2)
        a(f"""v_sub_f32 v{v1}, 0, v{v1}
        v_cvt_pk_bf16_f32 v{v1}, v{v1}, 0
        v_cndmask_b32 v{Q4[q]}, v{v1}, v{Q4[q]}, {sr(sm64,2)}""")
        if q == 0:
            a("s_nop 1"); m8(S[0], 0); m16(S[0], 0)
    a(f"s_mov_b32 s{sCnt}, 0\ns_mul_i32 s{sT3}, s2, 1\ns_lshr_b32 s{sT3}, s2, 5\ns_mul_i32 s{sT3}, s{sT3}, 102400\ns_add_u32 s{sT3}, s{sT3}, {WS_WO}\ns_barrier")
    stamp(6)
    a(".p2align 3")
    a.label("Lp2_loop")
    a(f"s_setprio 3\ns_cmp_eq_u32 s{sCnt}, 7\ns_cbranch_scc1 Lp2_now")
    kv_chunk("l")
    a(f"""s_cmp_ge_u32 s{sWp}, 102400
    s_cbranch_scc1 Lp2_now
    s_add_u32 m0, s{sWp}, {L_WO}
    s_add_u32 s{sT}, s{sWp}, s{sT3}
    buffer_load_dwordx4 v{vl16}, {WSR}, s{sT} offen sc1 lds
    buffer_load_dwordx4 v{vl16}, {WSR}, s{sT} offen offset:1024 sc1 lds
    s_add_u32 s{sWp}, s{sWp}, 16384
    s_cmp_lg_u32 s{sCnt}, 1
    s_cbranch_scc1 Lp2_now""")
    job_store(RP2, sDst2); job_store(RPi, sDst)
    a.label("Lp2_now")
    prio = {5: 2, 6: 1, 7: 0}
    for u in range(8):
        t, q = divmod(u, 2)
        cur, nxt, prv = S[u % 4], S[(u+1) % 4], S[(u-1) % 4]
        off = t * 2560
        if u in prio: a(f"s_setprio {prio[u]}")
        if q == 0:
            m8(nxt, 1); a(f"ds_read_b64 {vr(K4,2)}, v{aK4} offset:{off+1024}")
            ex(cur, 0, 4)
            m16(nxt, 1); a(f"ds_read_b128 {vr(K16,4)}, v{aK16} offset:{off}")
            ex(cur, 4, 8)
            sm(O[1], V1, prv + 8); a(f"ds_read_b128 {vr(V1,4)}, v{aV} offset:{off+1920}")
            ex(cur, 8, 12)
            if t: a("s_waitcnt lgkmcnt(3)")
            sm(O[0], V0, cur)
            ex(cur, 12, 16)
        else:
            a("s_waitcnt lgkmcnt(1)")
            m8(nxt, 0); ex(cur, 0, 4); m16(nxt, 0); ex(cur, 4, 8)
            a("s_waitcnt lgkmcnt(0)")
            sm(O[0], V1, prv + 8); ex(cur, 8, 12)
            sm(O[1], V0, cur); a(f"ds_read_b128 {vr(V0,4)}, v{aV} offset:{off+1280}")
            ex(cur, 12, 16)
    a(f"""v_xor_b32 v{aK16}, v{xK16}, v{aK16}
    v_xor_b32 v{aK4}, v{xK4}, v{aK4}
    v_xor_b32 v{aV}, v{xV}, v{aV}
    s_add_u32 s{sCnt}, s{sCnt}, 1
    s_cmp_lt_u32 s{sCnt}, 8
    s_waitcnt vmcnt(0) lgkmcnt(0)
    s_barrier
    s_cbranch_scc1 Lp2_loop""")
    sm(O[1], V1, S[3] + 8)
    a(f"""s_mul_i32 s{sT}, s{sw}, 3072
    s_add_u32 s{sT2}, s{sT}, {L_RING+CH}
    v_add_u32 v{v1}, s{sT2}, v{vl16}
    s_xor_b32 s{sT}, s{sw}, 4
    s_mul_i32 s{sT}, s{sT}, 3072
    s_add_u32 s{sT2}, s{sT}, {L_RING+CH}
    v_add_u32 v{v2}, s{sT2}, v{vl16}
    s_nop 4""")
    for i in range(3): a(f"ds_write_b128 v{v1}, {vr(O[1]+4*i,4)} offset:{1024*i}")
    a("s_waitcnt lgkmcnt(0)\ns_barrier")
    for i in range(3): a(f"ds_read_b128 {vr(S[0]+4*i,4)}, v{v2} offset:{1024*i}")
    a("s_waitcnt lgkmcnt(0)")
    for i in range(0, 12, 2): a(f"v_pk_add_f32 {vr(O[0]+i,2)}, {vr(O[0]+i,2)}, {vr(S[0]+i,2)}")
    a(f"v_mov_b32 v{v3}, v{O[0]+8}\nv_mov_b32 v{v4}, v{O[0]+8}\nv_mul_f32 v{v1}, 0, v{O[0]}")
    for i in range(1, 12):
        a(f"v_fma_f32 v{v1}, 0, v{O[0]+i}, v{v1}")
        if i == 2: a(f"v_permlane32_swap_b32 v{v3}, v{v4}")
    a(f"""v_add_f32 v{v1}, v{v1}, v{v4}
    v_cmp_gt_f32 vcc, {fbits(2.0**60)}, v{v1}
    s_mov_b64 {sr(sRet,2)}, vcc
    v_cmp_lt_f32 vcc, {fbits(2.0**-60)}, v{v1}
    s_and_b64 vcc, vcc, {sr(sRet,2)}
    s_cmp_eq_u64 vcc, -1
    s_cbranch_scc0 Lp2_slow""")
    a.label("Lp2_fin")
    a(f"""v_rcp_f32 v{v1}, v{v4}
    s_lshl_b32 s{sT}, s{sqt}, 5
    s_add_u32 s{sT}, s{sT}, s{shead}
    s_lshl_b32 s{sT2}, s{sT}, 10
    s_add_u32 s{sT2}, s{sT2}, {WS_OM}
    s_lshl_b32 s{sT}, s{sT}, 8
    s_add_u32 s{sT}, s{sT}, {WS_OT}""")
    for i in range(12): a(f"v_mul_f32 v{O[0]+i}, v{v1}, v{O[0]+i}")
    for i in range(6): a(f"v_cvt_pk_bf16_f32 v{O[0]+i}, v{O[0]+2*i}, v{O[0]+2*i+1}")
    a(f"""buffer_store_dwordx4 {vr(O[0],4)}, v{vl16}, {WSR}, s{sT2} offen sc1
    s_mov_b64 exec, 0xffffffff
    buffer_store_dwordx2 {vr(O[0]+4,2)}, v{gK4}, {WSR}, s{sT} offen sc1
    s_mov_b64 exec, -1""")
    stamp(7)
    arrive(11, 2)

    phase_regs()
    srb = a.s(); sc = a.s(); sTB = a.s(); sRow = a.s(); sXT = a.s()
    vR = [a.v() for _ in range(3)]; vg = a.v(); vt16 = a.v(); vEp = a.v()
    P35V = a.nv; P35S = a.ns
    a(f"""s_and_b32 s{srb}, s2, 7
    s_lshl_b32 s{srb}, s{srb}, 2
    s_bfe_u32 s{sT}, s2, 0x20003
    s_add_u32 s{srb}, s{srb}, s{sT}
    s_lshr_b32 s{sc}, s2, 5
    s_lshl_b32 s{sTB}, s{srb}, 2
    s_add_u32 s{sTB}, s{sTB}, s{slw}""")
    a(f"s_cmp_ge_u32 s{sw}, 4\ns_cbranch_scc1 Lld3")
    sA = a.s(); sA2 = a.s()
    vAm = a.v(); vAt = a.v(); rB = [a.v(), a.v()]
    A3 = a.v(80); fB = [[a.v(4) for _ in range(5)] for _ in range(2)]; acc = [a.v(4) for _ in range(5)]; res = a.v(10, 2); tq = a.v(4)
    a(f"""s_setprio 2
    v_bfe_u32 v{vg}, v0, 4, 2
    v_and_b32 v{vt16}, 15, v0
    s_mul_i32 s{sRow}, s{sTB}, {16*1280}
    s_mul_i32 s{sT}, s{sc}, 160
    s_add_u32 s{sRow}, s{sRow}, s{sT}
    s_mul_i32 s{sXT}, s{slw}, 3072
    s_add_u32 s{sXT}, s{sXT}, {L_SCR}""")
    for k in range(3):
        a(f"""v_add_u32 v{v1}, {64*k}, v{vl}
        v_mul_u32_u24 v{v2}, 6554, v{v1}
        v_lshrrev_b32 v{v2}, 16, v{v2}
        v_mul_u32_u24 v{v2}, {1280-160}, v{v2}
        v_lshl_add_u32 v{vR[k]}, v{v1}, 4, v{v2}""")
    a(f"""v_cmp_gt_u32 vcc, 32, v{vl}
    v_mov_b32 v{v1}, 0x7f000000
    v_mul_u32_u24 v{vEp}, 160, v{vt16}
    v_cndmask_b32 v{vR[2]}, v{v1}, v{vR[2]}, vcc
    v_lshl_add_u32 v{vEp}, v{vg}, 3, v{vEp}
    s_and_b32 s{sT}, s{slw}, 1
    s_lshl_b32 s{sT}, s{sT}, 4
    v_add_u32 v{v1}, s{sT}, v{vt16}
    v_lshlrev_b32 v{v2}, 9, v{vg}
    v_lshl_add_u32 v{vAm}, v{v1}, 4, v{v2}
    v_lshl_add_u32 v{vAt}, v{v1}, 3, v{v2}
    s_lshr_b32 s{sT}, s{sTB}, 1
    s_lshl_b32 s{sA}, s{sT}, 15
    s_add_u32 s{sA}, s{sA}, {WS_OM}
    s_lshl_b32 s{sA2}, s{sT}, 13
    s_add_u32 s{sA2}, s{sA2}, {WS_OT}
    v_add_u32 v{rB[0]}, {L_WO}, v{vl16}
    v_add_u32 v{rB[1]}, {L_WO+51200}, v{vl16}""")
    srd(sR, pX, T*D*2)
    for r in [x + i for x in acc for i in range(4)]: a(f"v_mov_b32 v{r}, 0")
    def rd3(u, b): return f"ds_read_b128 {vr(fB[u&1][b],4)}, v{rB[u//10]} offset:{(u%10)*5120+b*1024}"
    for b in range(5): a(rd3(0, b))
    a("s_barrier")
    stamp(8)
    for u in range(16):
        if u and u % 2 == 0: a(f"s_add_u32 s{sA}, s{sA}, 4096")
        a(f"buffer_load_dwordx4 {vr(A3+4*u,4)}, v{vAm}, {WSR}, s{sA} offen offset:{(u&1)*2048} sc1")
    for u in range(16, 20):
        if u == 18: a(f"s_add_u32 s{sA2}, s{sA2}, 4096")
        for e in range(2): a(f"buffer_load_dwordx2 {vr(A3+4*u+2*e,2)}, v{vAt}, {WSR}, s{sA2} offen offset:{(u&1)*2048+e*256} sc1")
    for k in range(3):
        a(f"s_add_u32 m0, s{sXT}, {1024*k}\ns_nop 0\nbuffer_load_dwordx4 v{vR[k]}, {sr(sR,4)}, s{sRow} offen lds")
    for u in range(20):
        left = (15 - u + 8 if u < 16 else 2 * (19 - u)) + 3
        a(f"s_waitcnt vmcnt({left}) lgkmcnt(0)")
        for b in range(5):
            a(f"v_mfma_f32_16x16x32_bf16 {vr(acc[b],4)}, {vr(fB[u&1][b],4)}, {vr(A3+4*u,4)}, {vr(acc[b],4)}")
            if u < 19: a(rd3(u + 1, b))
    a(f"""v_add_u32 v{v1}, s{sXT}, v{vEp}
    s_mov_b32 s{sT3}, 0xffff0000
    s_mul_i32 s{sA}, s{sTB}, 20
    s_lshr_b32 s{sT}, s{sc}, 1
    s_mul_i32 s{sT2}, s{sT}, 5
    s_add_u32 s{sA}, s{sA}, s{sT2}
    s_lshl_b32 s{sA}, s{sA}, 10
    s_add_u32 s{sA}, s{sA}, {WS_H}
    s_waitcnt vmcnt(0)""")
    for b in range(5): a(f"ds_read_b64 {vr(res+2*b,2)}, v{v1} offset:{32*b}")
    a(f"""s_and_b32 s{sT2}, s{sc}, 1
    s_lshl_b32 s{sA2}, s{sT2}, 9
    s_add_u32 s{sA2}, s{sA2}, s{sA}
    s_add_u32 s{sA2}, s{sA2}, 4096
    s_lshl_b32 s{sCnt}, s{sT2}, 11
    s_add_u32 s{sA}, s{sA}, s{sCnt}""")
    def add_res(b, accb, src):
        a(f"""v_lshlrev_b32 v{tq}, 16, v{src}
        v_and_b32 v{tq+1}, s{sT3}, v{src}
        v_lshlrev_b32 v{tq+2}, 16, v{src+1}
        v_and_b32 v{tq+3}, s{sT3}, v{src+1}
        v_pk_add_f32 {vr(accb,2)}, {vr(accb,2)}, {vr(tq,2)}
        v_pk_add_f32 {vr(accb+2,2)}, {vr(accb+2,2)}, {vr(tq+2,2)}""")
    for b in range(5):
        a(f"s_waitcnt lgkmcnt({4-b})")
        add_res(b, acc[b], res + 2*b)
        a(f"v_cvt_pk_bf16_f32 v{hp+2*b}, v{acc[b]}, v{acc[b]+1}\nv_cvt_pk_bf16_f32 v{hp+2*b+1}, v{acc[b]+2}, v{acc[b]+3}")
        if b in (1, 3): a(f"buffer_store_dwordx4 {vr(hp+2*b-2,4)}, v{vl16}, {WSR}, s{sA} offen offset:{512*(b-1)} sc1")
    sq = res
    a(f"""v_mov_b32 v{tq}, v{hp+8}
    v_mov_b32 v{tq+1}, v{hp+9}
    v_mov_b32 v{tq+2}, v{hp+8}
    v_mov_b32 v{tq+3}, v{hp+9}
    v_pk_mul_f32 {vr(sq,2)}, {vr(acc[0],2)}, {vr(acc[0],2)}
    v_pk_add_f32 {vr(sq+2,2)}, {vr(acc[0],2)}, {vr(acc[0]+2,2)}
    v_permlane32_swap_b32 v{tq}, v{tq+2}
    v_permlane32_swap_b32 v{tq+1}, v{tq+3}
    s_mov_b64 exec, 0xffffffff
    buffer_store_dwordx4 {vr(tq,4)}, v{vl16}, {WSR}, s{sA2} offen sc1
    s_mov_b64 exec, -1""")
    for i in range(2, 20, 2):
        a(f"v_pk_fma_f32 {vr(sq,2)}, {vr(acc[0]+i,2)}, {vr(acc[0]+i,2)}, {vr(sq,2)}")
        if i >= 4: a(f"v_pk_add_f32 {vr(sq+2,2)}, {vr(sq+2,2)}, {vr(acc[0]+i,2)}")
    a(f"""v_add_f32 v{sq}, v{sq}, v{sq+1}
    v_add_f32 v{sq+2}, v{sq+2}, v{sq+3}
    s_lshl_b32 s{sA}, s{sTB}, 10
    s_lshl_b32 s{sT}, s{sT}, 8
    v_permlane32_swap_b32 v{sq+2}, v{sq}
    v_add_f32 v{sq}, v{sq}, v{sq+2}
    v_mov_b32 v{sq+1}, v{sq}
    s_add_u32 s{sA}, s{sA}, s{sT}
    s_lshl_b32 s{sT2}, s{sT2}, 3
    v_permlane16_swap_b32 v{sq}, v{sq+1}
    v_add_f32 v{sq}, v{sq}, v{sq+1}
    s_add_u32 s{sA}, s{sA}, s{sT2}
    s_add_u32 s{sA}, s{sA}, {WS_ST}
    v_lshlrev_b32 v{v1}, 4, v{vt16}
    v_lshl_add_u32 v{v1}, v{vh}, 2, v{v1}
    s_mov_b32 exec_lo, 0xffff
    s_mov_b32 exec_hi, 0xffff
    buffer_store_dword v{sq}, v{v1}, {WSR}, s{sA} offen sc1
    s_mov_b64 exec, -1
    s_barrier""")
    arrive(15, 3)

    a.nv = P35V; a.ns = P35S
    srb4 = a.s(); scb = a.s(); sA = [a.s(), a.s()]; sHq = a.s(4)
    rB = [a.v(), a.v()]
    A4 = a.v(80); fB = [a.v(4) for _ in range(7)]; acc = [[a.v(4) for _ in range(7)] for _ in range(2)]
    stv = [a.v(4), a.v(4)]; pm = a.v(2); pr = a.v(2); pz = a.v(2); tz = a.v(8)
    def p4_ids():
        a(f"""s_lshr_b32 s{srb4}, s{srb}, 1
        s_lshl_b32 s{scb}, s{sc}, 1
        s_and_b32 s{sT}, s{srb}, 1
        s_add_u32 s{scb}, s{scb}, s{sT}""")
    def cluster_flags(dst):
        a(f"""s_and_b32 s{sT}, s2, 0x17
        s_lshl_b32 s{sT}, s{sT}, 7
        s_add_u32 s{sT}, s{sT}, {WS_FL}
        v_and_b32 v{dst}, 1, v0
        v_lshlrev_b32 v{dst}, 10, v{dst}
        v_bfe_u32 v{v2}, v0, 1, 3
        v_lshl_add_u32 v{dst}, v{v2}, 12, v{dst}
        v_add_u32 v{dst}, s{sT}, v{dst}""")
    p4_ids()
    a(f"s_mov_b32 s{sHq+3}, s{sT3}")
    cluster_flags(v1)
    a(f"""s_lshl_b32 s{sT}, s{srb4}, 3
    s_lshl_b32 s{sT2}, s{slw}, 1
    s_add_u32 s{sT3}, s{sT}, s{sT2}
    s_mul_i32 s{sA[0]}, s{sT3}, 20480
    s_add_u32 s{sA[0]}, s{sA[0]}, {WS_H}
    s_add_u32 s{sA[1]}, s{sA[0]}, 20480
    s_lshl_b32 s{sT}, s{sT3}, 10
    s_add_u32 s{sT}, s{sT}, {WS_ST}
    s_mov_b32 s{sR}, s{sWS}
    s_mov_b32 s{sR+1}, s{sWS+1}
    s_mov_b32 s{sR+2}, {WS_END}
    v_add_u32 v{rB[0]}, {L_W1}, v{vl16}
    v_add_u32 v{rB[1]}, {L_W1+35840}, v{vl16}""")
    for r in range(56): a(f"v_mov_b32 v{acc[0][0]+r}, 0")
    a(f"s_cmp_lg_u32 s{sHq+3}, 12\ns_cbranch_scc1 Ls3_done")
    poll(v1, 3)
    a.label("Ls3_done")
    a("s_barrier")
    stamp(9)
    def ld4(j):
        for tb in range(2):
            a(f"buffer_load_dwordx4 {vr(A4+8*j+4*tb,4)}, v{vl16}, {sr(sR,4)}, s{sA[tb]} offen offset:{(j&1)*1024} sc1")
        if j & 1: a(f"s_add_u32 s{sA[0]}, s{sA[0]}, 2048\ns_add_u32 s{sA[1]}, s{sA[1]}, 2048")
    def rd4(j, b): return f"ds_read_b128 {vr(fB[b],4)}, v{rB[(j%10)//5]} offset:{(j%5)*7168+b*1024}"
    for tb in range(2): a(f"buffer_load_dwordx4 {vr(stv[tb],4)}, v{vl16}, {WSR}, s{sT} offen offset:{1024*tb} sc1")
    for j in range(10):
        ld4(j)
        if j == 0:
            for b in range(7): a(rd4(0, b))
    a(f"s_mov_b32 s{sCnt}, 0")
    a(".p2align 3")
    a.label("Lp4_loop")
    for j in range(10):
        a("s_waitcnt vmcnt(18)")
        for b in range(7):
            a("s_waitcnt lgkmcnt(6)")
            for tb in range(2):
                a(f"v_mfma_f32_16x16x32_bf16 {vr(acc[tb][b],4)}, {vr(fB[b],4)}, {vr(A4+8*j+4*tb,4)}, {vr(acc[tb][b],4)}")
            a(rd4(j + 1, b))
        ld4(j)
        if j == 5: a(f"v_add_u32 v{rB[0]}, 71680, v{rB[0]}")
        if j == 9: a(f"v_add_u32 v{rB[1]}, 71680, v{rB[1]}")
    a(f"""s_mov_b32 s{sR+2}, 0
    s_add_u32 s{sCnt}, s{sCnt}, 1
    s_cmp_lt_u32 s{sCnt}, 2
    s_cbranch_scc1 Lp4_loop""")
    for tb in range(2):
        s_ = stv[tb]
        a(f"""v_add_f32 v{s_}, v{s_}, v{s_+2}
        v_add_f32 v{s_+1}, v{s_+1}, v{s_+3}
        v_mov_b32 v{s_+2}, v{s_}
        v_mov_b32 v{s_+3}, v{s_+1}
        s_nop 1
        v_permlane32_swap_b32 v{s_}, v{s_+2}
        v_permlane32_swap_b32 v{s_+1}, v{s_+3}
        v_add_f32 v{s_}, v{s_}, v{s_+2}
        v_add_f32 v{s_+1}, v{s_+1}, v{s_+3}
        v_mov_b32 v{s_+2}, v{s_}
        v_mov_b32 v{s_+3}, v{s_+1}
        s_nop 1
        v_permlane16_swap_b32 v{s_}, v{s_+2}
        v_permlane16_swap_b32 v{s_+1}, v{s_+3}
        v_add_f32 v{s_}, v{s_}, v{s_+2}
        v_add_f32 v{s_+1}, v{s_+1}, v{s_+3}
        v_mul_f32 v{pm+tb}, {fbits(1.0/D)}, v{s_}
        v_mul_f32 v{s_+1}, {fbits(1.0/D)}, v{s_+1}
        v_fma_f32 v{s_+1}, -v{pm+tb}, v{pm+tb}, v{s_+1}
        v_max_f32 v{s_+1}, 0, v{s_+1}
        v_add_f32 v{s_+1}, {fbits(1e-5)}, v{s_+1}
        v_rsq_f32 v{pr+tb}, v{s_+1}
        s_nop 0
        v_mul_f32 v{pz+tb}, {fbits(-math.log2(math.e))}, v{pr+tb}""")
    a(f"""s_lshr_b32 s{sT}, s{scb}, 1
    s_min_u32 s{sT2}, s{sT}, 6
    s_mul_i32 s{sHq}, s{scb}, 3
    s_add_u32 s{sHq}, s{sHq}, s{sT2}
    s_mul_i32 s{sT3}, s{sT3}, 54
    s_add_u32 s{sHq}, s{sHq}, s{sT3}
    s_lshl_b32 s{sHq}, s{sHq}, 10
    s_add_u32 s{sHq}, s{sHq}, {WS_H1}
    s_add_u32 s{sHq+1}, s{sHq}, {54*1024}
    s_mul_i32 s{sT}, s{sT}, 7
    s_add_u32 s{sT}, s{sT}, s{sT3}
    s_lshl_b32 s{sT}, s{sT}, 10
    s_and_b32 s{sT2}, s{scb}, 1
    s_lshl_b32 s{sT2}, s{sT2}, 9
    s_add_u32 s{sT}, s{sT}, s{sT2}
    s_add_u32 s{sHq+2}, s{sT}, {WS_H1+6*1024}
    v_lshlrev_b32 v{v1}, 4, v{vg}
    v_mul_u32_u24 v{v2}, {54*1024}, v{vh}
    v_lshl_add_u32 v{v2}, v{vt}, 4, v{v2}
    s_waitcnt lgkmcnt(0)
    s_barrier""")
    stamp(10)
    for b in range(7): a(f"ds_read_b128 {vr(fB[b],4)}, v{v1} offset:{L_SCR+64*b}")
    def silu_blk(tb, b, dst):
        A = acc[tb][b]; z = tz + 4 * (b & 1)
        om = f"op_sel:[{tb},0] op_sel_hi:[{tb},1]"
        for i in (0, 2): a(f"v_pk_fma_f32 {vr(A+i,2)}, {vr(pm,2)}, {vr(fB[b]+i,2)}, {vr(A+i,2)} op_sel:[{tb},0,0] op_sel_hi:[{tb},1,1] neg_lo:[1,0,0] neg_hi:[1,0,0]")
        for i in (0, 2): a(f"v_pk_mul_f32 {vr(z+i,2)}, {vr(pz,2)}, {vr(A+i,2)} {om}")
        for i in range(4): a(f"v_exp_f32 v{z+i}, v{z+i}")
        for i in (0, 2): a(f"v_pk_mul_f32 {vr(A+i,2)}, {vr(pr,2)}, {vr(A+i,2)} {om}")
        for i in (0, 2): a(f"v_pk_add_f32 {vr(z+i,2)}, {vr(z+i,2)}, 1.0 op_sel_hi:[1,0]")
        for i in range(4): a(f"v_rcp_f32 v{z+i}, v{z+i}")
        a("s_nop 0")
        for i in (0, 2): a(f"v_pk_mul_f32 {vr(A+i,2)}, {vr(A+i,2)}, {vr(z+i,2)}")
        a(f"v_cvt_pk_bf16_f32 v{dst}, v{A}, v{A+1}\nv_cvt_pk_bf16_f32 v{dst+1}, v{A+2}, v{A+3}")
    a("s_waitcnt vmcnt(0) lgkmcnt(0)")
    k = 0
    for p in range(3):
        for tb in range(2):
            o = A4 + 4 * k; k += 1
            silu_blk(tb, 2*p, o); silu_blk(tb, 2*p+1, o + 2)
            a(f"buffer_store_dwordx4 {vr(o,4)}, v{vl16}, {WSR}, s{sHq+tb} offen offset:{1024*p} sc1")
    a(f"s_cmp_ge_u32 s{scb}, 12\ns_cbranch_scc1 Lp4_done")
    o = A4 + 4 * k
    silu_blk(0, 6, o); silu_blk(1, 6, o + 2)
    a(f"""s_nop 1
    v_permlane32_swap_b32 v{o}, v{o+2}
    v_permlane32_swap_b32 v{o+1}, v{o+3}
    buffer_store_dwordx4 {vr(o,4)}, v{v2}, {WSR}, s{sHq+2} offen sc1""")
    a.label("Lp4_done")
    stamp(11)
    arrive(19, 4)

    a.nv = P35V; a.ns = P35S
    sA = [a.s(), a.s()]; sRd = a.s()
    rB = a.v(); bB = a.v()
    A5 = a.v(72); fB = [a.v(4) for _ in range(5)]; acc = [[a.v(4) for _ in range(5)] for _ in range(2)]; tq = a.v(4)
    cluster_flags(v1)
    a(f"""s_and_b32 s{sT2}, s{slw}, 1
    s_mul_i32 s{sA[0]}, s{sTB}, 54
    s_xor_b32 s{sT}, s{sTB}, 1
    s_mul_i32 s{sA[1]}, s{sT}, 54""")
    for tb in range(2): a(f"s_add_u32 s{sA[tb]}, s{sA[tb]}, s{sT2}\ns_lshl_b32 s{sA[tb]}, s{sA[tb]}, 10\ns_add_u32 s{sA[tb]}, s{sA[tb]}, {WS_H1}")
    a(f"""s_mul_i32 s{sT2}, s{sT2}, 5120
    s_add_u32 s{sT2}, s{sT2}, {L_W2}
    v_add_u32 v{bB}, s{sT2}, v{vl16}
    v_mov_b32 v{rB}, v{bB}
    s_mov_b32 s{sR+2}, {WS_END}
    s_mov_b32 s{sRd}, 0""")
    srd(sR2, pOUT, T*D*2)
    for r in range(40): a(f"v_mov_b32 v{acc[0][0]+r}, 0")
    a(f"s_cmp_lg_u32 s{sT3}, 16\ns_cbranch_scc1 Ls4_done")
    poll(v1, 4)
    a.label("Ls4_done")
    a(f"s_mov_b32 s{sCnt}, 0\ns_barrier")
    stamp(12)
    def ld5(j):
        for tb in range(2):
            a(f"buffer_load_dwordx4 {vr(A5+8*j+4*tb,4)}, v{vl16}, {sr(sR,4)}, s{sA[tb]} offen sc1\ns_add_u32 s{sA[tb]}, s{sA[tb]}, 2048")
    def rd5(j, b): return f"ds_read_b128 {vr(fB[b],4)}, v{rB} offset:{(j%3)*10240+b*1024}"
    for j in range(9):
        ld5(j)
        if j == 0:
            for b in range(5): a(rd5(0, b))
    a(".p2align 3")
    a.label("Lp5_loop")
    a(f"s_cmp_eq_u32 s{sCnt}, 2\ns_cselect_b32 s{sR+2}, 0, s{sR+2}")
    for j in range(9):
        if j % 3 == 2:
            a(f"""s_add_u32 s{sRd}, s{sRd}, 30720
            s_cmp_eq_u32 s{sRd}, 153600
            s_cselect_b32 s{sRd}, 0, s{sRd}
            v_add_u32 v{rB}, s{sRd}, v{bB}""")
        a("s_waitcnt vmcnt(16)")
        for b in range(5):
            a("s_waitcnt lgkmcnt(4)")
            for tb in range(2):
                a(f"v_mfma_f32_16x16x32_bf16 {vr(acc[tb][b],4)}, {vr(fB[b],4)}, {vr(A5+8*j+4*tb,4)}, {vr(acc[tb][b],4)}")
            a(rd5(j + 1, b))
        ld5(j)
        if j % 3 == 2: a("s_barrier")
    a(f"""s_add_u32 s{sCnt}, s{sCnt}, 1
    s_cmp_lt_u32 s{sCnt}, 3
    s_cbranch_scc1 Lp5_loop
    s_mul_i32 s{sT}, s{slw}, 5120
    s_add_u32 s{sT}, s{sT}, {L_W2+30720}
    v_add_u32 v{v1}, s{sT}, v{vl16}
    s_xor_b32 s{sT}, s{slw}, 1
    s_mul_i32 s{sT}, s{sT}, 5120
    s_add_u32 s{sT}, s{sT}, {L_W2+30720}
    v_add_u32 v{v2}, s{sT}, v{vl16}
    s_mov_b32 s{sT3}, 0xffff0000""")
    for b in range(5): a(f"ds_write_b128 v{v1}, {vr(acc[1][b],4)} offset:{1024*b}")
    a(f"s_add_u32 s{sXT}, s{sXT}, {L_W2+61440}\nv_add_u32 v{v1}, s{sXT}, v{vEp}")
    for b in range(5): add_res(b, acc[0][b], hp + 2*b)
    a("s_waitcnt lgkmcnt(0)\ns_barrier")
    for b in range(5): a(f"ds_read_b128 {vr(fB[b],4)}, v{v2} offset:{1024*b}")
    for b in range(5):
        A = acc[0][b]
        a(f"""s_waitcnt lgkmcnt(4)
        v_pk_add_f32 {vr(A,2)}, {vr(A,2)}, {vr(fB[b],2)}
        v_pk_add_f32 {vr(A+2,2)}, {vr(A+2,2)}, {vr(fB[b]+2,2)}
        v_cvt_pk_bf16_f32 v{A}, v{A}, v{A+1}
        v_cvt_pk_bf16_f32 v{A+1}, v{A+2}, v{A+3}
        ds_write_b64 v{v1}, {vr(A,2)} offset:{32*b}""")
    a(f"v_add_u32 v{v1}, s{sXT}, v{vl16}\ns_waitcnt lgkmcnt(0)")
    for k in range(3): a(f"ds_read_b128 {vr(fB[k],4)}, v{v1} offset:{1024*k}")
    for k in range(3):
        a(f"s_waitcnt lgkmcnt({2-k})\nbuffer_store_dwordx4 {vr(fB[k],4)}, v{vR[k]}, {sr(sR2,4)}, s{sRow} offen")
    flush()
    a.label("Lend")
    a("s_endpgm")

    a.nv = P35V; a.ns = P35S
    srb4 = a.s(); scb = a.s(); sG = a.s(); sM = a.s(); sE = a.s()
    fB = [a.v(4) for _ in range(10)]; cs = a.v(4); on = a.v(4)
    a.label("Lld3")
    p4_ids()
    def stream(tag, lim):
        a.label(f"Lst_{tag}")
        a(f"""s_mov_b32 m0, s{sM}
        s_add_u32 s{sM}, s{sM}, 4096
        buffer_load_dwordx4 v{vl16}, {WSR}, s{sG} offen sc1 lds
        s_add_u32 s{sG}, s{sG}, 4096
        s_cmp_lt_u32 s{sM}, {lim}
        s_cbranch_scc1 Lst_{tag}""")
    a(f"""s_lshl_b32 s{sT}, s{slw}, 10
    s_mul_i32 s{sG}, s{scb}, 143360
    s_add_u32 s{sG}, s{sG}, s{sT}
    s_add_u32 s{sG}, s{sG}, {WS_W1}
    s_add_u32 s{sM}, s{sT}, {L_W1}
    s_lshl_b32 s{sT}, s{slw}, 13
    s_add_u32 s{sT}, s{sT}, {WS_FL}
    v_lshl_add_u32 v{v1}, v{vl}, 7, s{sT}""")
    poll(v1, 2)
    a("s_barrier")
    stream("a", L_WO)
    a("s_barrier")
    stream("b", LDS_BYTES)
    for i in range(4): a(f"v_mov_b32 v{on+i}, 0x3f803f80")
    a(f"s_mov_b32 s{sE}, s{slw}\ns_waitcnt vmcnt(0)\ns_barrier")
    a.label("Lcs")
    a(f"s_lshl_b32 s{sT}, s{sE}, 10\ns_add_u32 s{sT}, s{sT}, {L_W1}\nv_add_u32 v{v1}, s{sT}, v{vl16}\ns_mov_b32 s{sCnt}, 0")
    for i in range(4): a(f"v_mov_b32 v{cs+i}, 0")
    a.label("Lcs2")
    for u in range(5): a(f"ds_read_b128 {vr(fB[u],4)}, v{v1} offset:{u*7168}")
    a(f"v_add_u32 v{v1}, 35840, v{v1}")
    for u in range(5):
        a(f"s_waitcnt lgkmcnt({4-u})\nv_mfma_f32_16x16x32_bf16 {vr(cs,4)}, {vr(fB[u],4)}, {vr(on,4)}, {vr(cs,4)}")
    a(f"""s_add_u32 s{sCnt}, s{sCnt}, 1
    s_cmp_lt_u32 s{sCnt}, 4
    s_cbranch_scc1 Lcs2
    s_lshl_b32 s{sT}, s{sE}, 6
    s_add_u32 s{sT}, s{sT}, {L_SCR}
    v_and_b32 v{v2}, 48, v0
    v_add_u32 v{v2}, s{sT}, v{v2}
    s_add_u32 s{sE}, s{sE}, 4
    s_cmp_lt_u32 s{sE}, 7
    s_nop 0
    ds_write_b128 v{v2}, {vr(cs,4)}
    s_cbranch_scc1 Lcs""")
    a(f"""s_lshl_b32 s{sT}, s{slw}, 10
    s_mul_i32 s{sG}, s{sc}, {54*5120}
    s_add_u32 s{sG}, s{sG}, s{sT}
    s_add_u32 s{sG}, s{sG}, {WS_W2}
    s_add_u32 s{sM}, s{sT}, {L_W2}
    s_waitcnt lgkmcnt(0)
    s_barrier""")
    stream("c", LDS_BYTES)
    a(f"""s_sub_u32 s{sM}, s{sM}, 153600
    s_mov_b32 s{sE}, {L_W2}
    s_mov_b32 s{sCnt}, 0
    s_waitcnt vmcnt(0)
    s_barrier""")
    a.label("Lld5")
    a(f"s_waitcnt vmcnt(14)\ns_barrier\ns_add_u32 s{sE}, s{sE}, 30720")
    stream("d", f"s{sE}")
    a(f"""s_add_u32 s{sCnt}, s{sCnt}, 1
    s_cmp_lt_u32 s{sCnt}, 4
    s_cbranch_scc1 Lld5
    s_waitcnt vmcnt(14)
    s_barrier
    s_waitcnt vmcnt(7)
    s_barrier
    s_waitcnt vmcnt(0)
    s_barrier""")
    flush()
    a("s_endpgm")

    a.label("Lp2_slow")
    vm = S[2]; valpha = S[2] + 1
    a(f"v_cndmask_b32 v{Q4[0]}, 0, v{Q4[0]}, {sr(sm64,2)}\nv_mov_b32 v{vm}, 0xff7fffff\ns_mov_b32 s{sCnt}, 0")
    for i in range(16): a(f"v_mov_b32 v{O[0]+i}, 0")
    a.label("Lp2_sloop")
    a(f"""s_add_u32 s{sT}, s{sCnt}, 63
    s_and_b32 s{sT}, s{sT}, 63
    s_mul_i32 s{sT}, s{sT}, 2560
    s_add_u32 s{sT}, s{sT}, s{sKV}
    s_mul_i32 s{sT2}, s{sCnt}, 2560
    s_add_u32 s{sT2}, s{sT2}, s{sKV}
    buffer_load_dwordx4 {vr(K16,4)}, v{vl16}, {WSR}, s{sT} offen sc1
    buffer_load_dwordx2 {vr(K4,2)}, v{gK4}, {WSR}, s{sT} offen offset:1024 sc1
    buffer_load_dwordx4 {vr(V0,4)}, v{gV}, {WSR}, s{sT} offen offset:1280 sc1
    buffer_load_dwordx4 {vr(V1,4)}, v{gV}, {WSR}, s{sT2} offen offset:1920 sc1
    s_waitcnt vmcnt(0)""")
    m8(S[0], 0); m16(S[0], 0)
    for i in range(4):
        a(f"v_cndmask_b32 v{V0+i}, v{vpad}, v{V0+i}, {sr(sm2,2)}\nv_cndmask_b32 v{V1+i}, v{vpad}, v{V1+i}, {sr(sm2,2)}")
    a("s_nop 7")
    rowmax(v1, S[0], v2)
    a(f"""v_max_f32 v{v1}, v{v1}, v{vm}
    v_sub_f32 v{valpha}, v{vm}, v{v1}
    v_exp_f32 v{valpha}, v{valpha}
    v_mov_b32 v{vm}, v{v1}""")
    for i in range(16): a(f"v_sub_f32 v{S[0]+i}, v{S[0]+i}, v{v1}")
    ex(S[0], 0, 16)
    for i in range(16): a(f"v_mul_f32 v{O[0]+i}, v{valpha}, v{O[0]+i}")
    a("s_nop 1")
    sm(O[0], V0, S[0]); sm(O[0], V1, S[0] + 8)
    a(f"""s_add_u32 s{sCnt}, s{sCnt}, 1
    s_cmp_lt_u32 s{sCnt}, 64
    s_cbranch_scc1 Lp2_sloop
    s_nop 11
    v_mov_b32 v{v3}, v{O[0]+8}
    v_mov_b32 v{v4}, v{O[0]+8}
    s_nop 1
    v_permlane32_swap_b32 v{v3}, v{v4}
    s_branch Lp2_fin""")
    body = a.text()
    bad = check_hazards(body)
    tab = ".p2align 4\n.type Ltable,@object\nLtable:\n"
    for i, (A_, B_, C_, E_) in enumerate(repack_table()):
        ld = 3456 if 20 <= i < 40 else 1280
        tab += f".long {A_*ld}, {B_*ld}, {C_*ld}, {E_*ld}\n"
    tab += ".size Ltable, .-Ltable\nLcode_end:\n"
    hdr = open("cdna_kernels/" + NAME + ".s.ref").read().split("\n")
    hdr = [l for l in hdr if l.startswith(";") and "@launch" not in l]
    out = "\n".join(hdr) + f"\n; @launch grid=(256,1,1) block=(512,1,1) lds={LDS_BYTES}\n" + body + tab
    nv = a.maxv
    assert nv <= 256 and a.maxs <= 64, (nv, a.maxs)
    out += f""".section .rodata,"a"
.p2align 6
.amdhsa_kernel {name}
  .amdhsa_next_free_vgpr {nv}
  .amdhsa_next_free_sgpr {100 if DIAG else a.maxs}
  .amdhsa_accum_offset {(nv+3)//4*4}
  .amdhsa_group_segment_fixed_size 0
  .amdhsa_kernarg_size 72
  .amdhsa_user_sgpr_count 2
  .amdhsa_user_sgpr_kernarg_segment_ptr 1
  .amdhsa_system_sgpr_workgroup_id_x 1
.end_amdhsa_kernel
"""
    return out, nv, a.maxs, bad

if __name__ == "__main__":
    out, nv, ns, bad = build()
    path = sys.argv[1] if len(sys.argv) > 1 else "cdna_kernels/" + NAME + ".s"
    open(path, "w").write(out)
    print("vgpr", nv, "sgpr", ns, "hazards:", len(bad), "WS_END", WS_END)
```
